```python
import torch

def _softmax(x, axis=-1):
    return torch.softmax(x, dim=axis)
def _gelu(x):
    return torch.nn.functional.gelu(x, approximate="tanh")
def _silu(x):
    return torch.nn.functional.silu(x)
def _sigmoid(x):
    return torch.sigmoid(x)
def _layernorm(x, axis=-1, eps=1e-5):
    m = x.mean(dim=axis, keepdim=True)
    v = x.var(dim=axis, keepdim=True, unbiased=False)
    return (x - m) / torch.sqrt(v + eps)
def _scatter_add(tgt, idx, src, axis=0):
    return tgt.clone().index_add_(axis, idx, src)
def _segment_sum(src, seg, n):
    out = torch.zeros((n,) + src.shape[1:], dtype=src.dtype)
    return out.index_add_(0, seg, src)
def _pad(x, pw):
    flat = tuple(v for pair in reversed(pw) for v in pair)
    return torch.nn.functional.pad(x, flat)

kernel_name = 'recurrent_scan__mha_block_cached__moe_arch_mod__prompt'

def setup_inputs():

    _w = (lambda a: (lambda t: t.to(torch.bfloat16) if t.is_floating_point() else t)(torch.as_tensor(a)))
    def _A_setup():
        B, Sq, D = 1, 2048, 640
        H, Sk, Dh = 32, 2048, 128
        return {
            "x": _w((lambda *s: torch.randn(*s, dtype=torch.bfloat16) * 0.05)(B, Sq, D)),
            "k_cache": _w((lambda *s: torch.randn(*s, dtype=torch.bfloat16) * 1.6)(B, H, Sk, Dh)),
            "v_cache": _w((lambda *s: torch.randn(*s, dtype=torch.bfloat16) * 0.2)(B, H, Sk, Dh)),
            "wq": _w((lambda *s: torch.randn(*s, dtype=torch.bfloat16) * 1.6)(D, H * Dh) * (D ** -0.5)),
            "wo": _w((lambda *s: torch.randn(*s, dtype=torch.bfloat16) * 0.2)(H * Dh, D) * ((H * Dh) ** -0.5)),
        }
    _A_in = _A_setup()

    def _B_setup():
        B, S, D, F, C = 1, 2048, 640, 1728, 8
        return {
            "x": _w((lambda *s: torch.randn(*s, dtype=torch.bfloat16) * 0.05)(B, S, D)),
            "w_r": _w((lambda *s: torch.randn(*s, dtype=torch.bfloat16) * 0.2)(D)),
            "w_gate": _w((lambda *s: torch.randn(*s, dtype=torch.bfloat16) * 0.1)(D, F)),
            "w_up": _w((lambda *s: torch.randn(*s, dtype=torch.bfloat16) * 0.1)(D, F)),
            "w_down": _w((lambda *s: torch.randn(*s, dtype=torch.bfloat16) * 0.1)(F, D)),
        }
    _B_in = _B_setup()

    return {
        "A_x": _A_in["x"],
        "A_k_cache": _A_in["k_cache"],
        "A_v_cache": _A_in["v_cache"],
        "A_wq": _A_in["wq"],
        "A_wo": _A_in["wo"],
        "B_x": _B_in["x"],
        "B_w_r": _B_in["w_r"],
        "B_w_gate": _B_in["w_gate"],
        "B_w_up": _B_in["w_up"],
        "B_w_down": _B_in["w_down"],
    }

def reference(A_x, A_k_cache, A_v_cache, A_wq, A_wo, B_x, B_w_r, B_w_gate, B_w_up, B_w_down):
    def _A_ref(x, k_cache, v_cache, wq, wo):
        B, Sq, D = x.shape
        H, Dh = 32, 128
        q = (lambda x, *d: x.permute(*d))((x @ wq).reshape(B, Sq, H, Dh), 0, 2, 1, 3)
        scores = torch.einsum("bhqd,bhkd->bhqk", q, k_cache) * (Dh ** -0.5)
        p = _softmax(scores, axis=-1)
        o = torch.einsum("bhqk,bhkd->bhqd", p, v_cache)
        return (lambda x, *d: x.permute(*d))(o, 0, 2, 1, 3).reshape(B, Sq, H * Dh) @ wo

    def _B_ref(x, w_r, w_gate, w_up, w_down):
        B, S, D = x.shape
        C = 8
        r = x @ w_r
        idx = torch.argsort(-r, axis=-1)[:, :C]
        idx_e = (lambda x, n, axis: torch.repeat_interleave(x, n, dim=axis))(idx.reshape(B, C, 1), D, axis=2)
        x_sel = (lambda x, i, axis: torch.take_along_dim(x, i, dim=axis))(x, idx_e, axis=1)
        g = _silu(x_sel @ w_gate)
        u = x_sel @ w_up
        y = (g * u) @ w_down
        r_sel = _sigmoid((lambda x, i, axis: torch.take_along_dim(x, i, dim=axis))(r, idx, axis=1))
        y = y * r_sel.reshape(B, C, 1)
        b_off = (torch.arange(B) * S).reshape(B, 1)
        flat_idx = (idx + b_off).reshape(B * C)
        zero = (x * 0.0).reshape(B * S, D)
        upd = _scatter_add(zero, flat_idx, y.reshape(B * C, D), axis=0)
        return x + upd.reshape(B, S, D)

    x = A_x
    xn = _layernorm(x, axis=-1)
    s = _A_ref(xn, A_k_cache, A_v_cache, A_wq, A_wo)
    g = _silu(_B_ref(xn, B_w_r, B_w_gate, B_w_up, B_w_down))
    return x + s * g
```

```python
import re

TRANS = ("v_exp_f32", "v_log_f32", "v_rcp_f32", "v_rsq_f32", "v_sqrt_f32", "v_sin_f32", "v_cos_f32")
RMW_DST = ("v_fmac_f32", "v_dot2c_f32_bf16", "v_writelane_b32", "s_addk_i32", "s_mulk_i32", "v_pk_fmac_f16")
_REG = re.compile(r"^(-?)(?:abs\()?\|?([vas])(?:(\d+)|\[(\d+):(\d+)\])\|?\)?$")


def r(cls, start, n=1):
    return f"{cls}{start}" if n == 1 else f"{cls}[{start}:{start + n - 1}]"


def v(start, n=1):
    return r("v", start, n)


def a(start, n=1):
    return r("a", start, n)


def s(start, n=1):
    return r("s", start, n)


def regs_of(tok):
    tok = tok.strip()
    if tok in ("vcc", "exec"):
        return [tok]
    if tok in ("vcc_lo", "vcc_hi"):
        return ["vcc"]
    if tok in ("exec_lo", "exec_hi"):
        return ["exec"]
    if tok == "m0":
        return ["m0"]
    m = _REG.match(tok)
    if not m:
        return []
    cls = m.group(2)
    if m.group(3) is not None:
        return [(cls, int(m.group(3)))]
    return [(cls, i) for i in range(int(m.group(4)), int(m.group(5)) + 1)]


class Ins:
    def __init__(self, text, tag=None):
        self.text = text.strip()
        self.tag = tag
        self.passes = 0
        self.srcc = []
        self.srcab = []
        self._parse()

    def __repr__(self):
        return self.text

    def _parse(self):
        t = self.text
        self.rd, self.wr = [], []
        if t.endswith(":"):
            self.kind, self.op = "label", t
            return
        if t.startswith(".") or t.startswith(";"):
            self.kind, self.op = "dir", t
            return
        parts = t.split(None, 1)
        op = self.op = parts[0]
        rest = parts[1] if len(parts) > 1 else ""
        toks = [x.strip() for x in re.split(r",(?![^\[\(]*[\]\)])", rest)] if rest else []
        mods = []
        if toks:
            last = toks[-1].split()
            toks[-1] = last[0] if last else ""
            mods = last[1:]
        self.mods = mods
        R = [regs_of(x) for x in toks]
        flat = lambda L: [x for y in L for x in y]
        base = re.sub(r"_(e32|e64|dpp|sdwa)$", "", op)
        if op.startswith("v_mfma"):
            self.kind = "mfma"
            self.passes = 8 if "32x32" in op else 4
            self.wr = R[0]
            self.srcab = R[1] + R[2]
            self.srcc = R[3]
            self.rd = self.srcab + self.srcc
        elif op.startswith("v_"):
            self.kind = "valu"
            if base in TRANS:
                self.kind = "trans"
            dpp = op.endswith("_dpp") or any(m.startswith(("row_", "quad_perm", "wave_")) for m in mods)
            self.dpp = dpp
            if base.startswith("v_cmpx"):
                self.wr, self.rd = R[0] + ["exec"], flat(R[1:])
            elif base.startswith("v_permlane") and "swap" in base:
                self.wr = self.rd = R[0] + R[1]
            elif base in ("v_add_co_u32", "v_sub_co_u32", "v_addc_co_u32", "v_subb_co_u32", "v_mad_u64_u32"):
                self.wr, self.rd = R[0] + R[1], flat(R[2:])
            elif base == "v_nop":
                pass
            else:
                self.wr, self.rd = R[0], flat(R[1:])
                if base in RMW_DST or dpp or "op_sel" in t and "v_pk_" not in t or op.endswith("_sdwa"):
                    self.rd = self.rd + R[0]
        elif op.startswith("ds_"):
            if op.startswith(("ds_read", "ds_bpermute", "ds_permute", "ds_swizzle")) or "_rtn" in op:
                self.kind, self.wr, self.rd = "ds_rd", R[0], flat(R[1:])
            else:
                self.kind, self.rd = "ds_wr", flat(R)
        elif op.startswith(("buffer_", "global_")):
            if op in ("buffer_wbl2", "buffer_inv"):
                self.kind = "vm_misc"
            elif "lds" in mods or "_lds_" in op:
                self.kind, self.rd = "dma", flat(R) + ["m0"]
            elif "_load" in op:
                self.kind, self.wr, self.rd = "vm_ld", R[0], flat(R[1:])
            elif "_atomic" in op:
                self.kind, self.rd = "vm_st", flat(R)
                if "sc0" in mods:
                    self.kind = "vm_ld"
                    self.wr = R[0]
            else:
                self.kind, self.rd = "vm_st", flat(R)
                self.wide = op.endswith(("x3", "x4"))
                self.data = R[0] if op.startswith("buffer_") else R[1]
        elif op.startswith(("s_load", "s_buffer_load", "s_memtime", "s_memrealtime")):
            self.kind, self.wr, self.rd = "smem", R[0], flat(R[1:])
        elif op == "s_waitcnt":
            self.kind = "wait"
            m = re.search(r"vmcnt\((\d+)\)", t)
            self.vm = int(m.group(1)) if m else None
            m = re.search(r"lgkmcnt\((\d+)\)", t)
            self.lg = int(m.group(1)) if m else None
        elif op == "s_nop":
            self.kind = "nop"
            self.n = int(toks[0], 0) + 1
        elif op == "s_barrier":
            self.kind = "barrier"
        elif op.startswith(("s_branch", "s_cbranch", "s_endpgm", "s_setprio", "s_sleep")):
            self.kind = "ctl"
            if "vcc" in op:
                self.rd = ["vcc"]
            if "exec" in op:
                self.rd = ["exec"]
            if "scc" in op:
                self.rd = ["scc"]
        elif op.startswith("s_cmp") or op.startswith("s_bitcmp"):
            self.kind, self.wr, self.rd = "salu", ["scc"], flat(R)
        elif op.startswith("s_"):
            self.kind, self.wr, self.rd = "salu", R[0] + ["scc"], flat(R[1:])
            if "saveexec" in op:
                self.wr, self.rd = self.wr + ["exec"], self.rd + ["exec"]
            if base in RMW_DST:
                self.rd = self.rd + R[0]
            if op.startswith(("s_mov", "s_getpc", "s_mul_i32", "s_mul_hi", "s_getreg")):
                self.wr = R[0]
            if op.startswith(("s_addc", "s_subb", "s_cselect")):
                self.rd = self.rd + ["scc"]
        else:
            raise ValueError("unknown instruction: " + t)

    @property
    def is_vec(self):
        return self.kind in ("valu", "trans")

    @property
    def cost(self):
        return 8 if self.kind == "trans" else 4


class Wait(Ins):
    def __init__(self, regs=(), tags=(), ds_all=False):
        self.text = "s_waitcnt ?"
        self.kind = "pwait"
        self.op = "pwait"
        self.rd, self.wr = [], []
        self.tag = None
        self.regs = set()
        for x in ([regs] if isinstance(regs, str) else regs):
            self.regs.update(regs_of(x))
        self.tags = set([tags] if isinstance(tags, str) else tags)
        self.ds_all = ds_all
        self.vm = None
        self.lg = None


class Block:
    def __init__(self, name):
        self.name = name
        self.ins = []

    def __call__(self, text, tag=None):
        if isinstance(text, Ins):
            self.ins.append(text)
            return text
        out = None
        for line in text.split("\n"):
            if line.strip():
                out = Ins(line, tag)
                self.ins.append(out)
        return out

    def extend(self, items):
        for x in items:
            self(x)


VM_KINDS = ("dma", "vm_ld", "vm_st")
DS_KINDS = ("ds_rd", "ds_wr")


def _merge(old, new):
    if new is None:
        return old
    return new if old is None else min(old, new)


def resolve_waits(paths, auto=True):
    for _ in range(50):
        changed = False
        for path in paths:
            vmq, dsq, smem = [], [], set()
            for blk in path:
                i = 0
                while i < len(blk.ins):
                    ins = blk.ins[i]
                    if ins.kind == "pwait":
                        nv = _need(vmq, ins.regs, ins.tags)
                        nl = 0 if ins.ds_all and dsq else _need(dsq, ins.regs, ins.tags)
                        if smem & ins.regs or (nl is not None and smem):
                            nl = 0
                        nv = None if nv is None else min(nv, 63)
                        nl = None if nl is None else min(nl, 15)
                        mv, ml = _merge(ins.vm, nv), _merge(ins.lg, nl)
                        if (mv, ml) != (ins.vm, ins.lg):
                            ins.vm, ins.lg = mv, ml
                            changed = True
                    if ins.kind in ("wait", "pwait"):
                        if ins.vm is not None:
                            del vmq[: max(0, len(vmq) - ins.vm)]
                        if ins.lg is not None:
                            del dsq[: max(0, len(dsq) - ins.lg)]
                            if ins.lg == 0:
                                smem = set()
                    else:
                        touched = set(ins.rd) | set(ins.wr)
                        pend = [x for q in (vmq, dsq) for o in q for x in o.wr if x in touched]
                        pend += [x for x in smem if x in touched]
                        if pend:
                            if not auto:
                                raise RuntimeError(f"uncovered load result {pend[:4]} at {blk.name}[{i}] {ins.text}")
                            w = Wait()
                            w.regs = set(pend)
                            w.auto = True
                            blk.ins.insert(i, w)
                            changed = True
                            continue
                        if ins.kind in VM_KINDS:
                            vmq.append(ins)
                        elif ins.kind in DS_KINDS:
                            dsq.append(ins)
                        elif ins.kind == "smem":
                            smem.update(ins.wr)
                    i += 1
        if not changed:
            break
    else:
        raise RuntimeError("wait resolution did not converge")


def _need(queue, regs, tags):
    last = -1
    for k, o in enumerate(queue):
        if (o.tag is not None and o.tag in tags) or any(x in regs for x in o.wr):
            last = k
    return None if last < 0 else len(queue) - 1 - last


def _states(ins):
    if ins.kind in ("label", "dir"):
        return 0
    if ins.kind == "pwait":
        return 1 if (ins.vm is not None or ins.lg is not None) else 0
    return ins.n if ins.kind == "nop" else 1


XDL_VALU = {4: 8, 8: 12}
XDL_OVERLAP_C = {4: 6, 8: 10}
XDL_WAR_C = {4: 3, 8: 7}


def required_gap(p, c):
    need = 0
    pw, prd = set(p.wr), set(p.rd)
    cr, cw = set(c.rd), set(c.wr)
    vec_c = c.kind in ("valu", "trans")
    mem_c = c.kind in VM_KINDS or c.kind in DS_KINDS
    if p.kind == "mfma":
        if c.kind == "mfma":
            if pw & set(c.srcab):
                need = max(need, XDL_VALU[p.passes])
            if pw & set(c.srcc) and (c.srcc != p.wr or c.passes != p.passes):
                need = max(need, XDL_OVERLAP_C[p.passes])
            if pw & cw and c.srcc != p.wr:
                need = max(need, XDL_OVERLAP_C[p.passes])
        elif (vec_c or mem_c) and pw & (cr | cw):
            need = max(need, XDL_VALU[p.passes])
        if (vec_c or c.kind in ("ds_rd", "vm_ld")) and set(p.srcc) & cw:
            need = max(need, XDL_WAR_C[p.passes])
    if p.kind in ("valu", "trans"):
        vw = {x for x in pw if isinstance(x, tuple) and x[0] in "va"}
        sw = {x for x in pw if x == "vcc" or (isinstance(x, tuple) and x[0] == "s")}
        if c.kind == "mfma" and vw & cr:
            need = max(need, 2)
        if c.kind == "mfma" and "exec" in pw:
            need = max(need, 4)
        if vec_c:
            if p.kind == "trans" and vw & cr and c.kind != "trans":
                need = max(need, 1)
            if p.kind == "trans" and vw & cr and c.kind == "trans":
                need = max(need, 1)
            if (c.op.startswith("v_permlane") or getattr(c, "dpp", False)) and vw & cr:
                need = max(need, 2)
            if c.op.startswith(("v_readlane", "v_readfirstlane")) and vw & cr:
                need = max(need, 1)
            if sw & cr:
                need = max(need, 4 if c.op.startswith(("v_readlane", "v_writelane", "v_div_fmas")) else 2)
            if "exec" in pw:
                if getattr(c, "dpp", False):
                    need = max(need, 5)
                elif c.op.startswith(("v_readlane", "v_readfirstlane", "v_writelane", "v_permlane")):
                    need = max(need, 4)
            if ("op_sel" in p.text and "v_pk_" not in p.text or p.op.endswith("_sdwa")) and vw & (cr | cw):
                need = max(need, 1)
        if c.kind in VM_KINDS and sw & cr:
            need = max(need, 5)
        if c.kind in ("salu", "ctl", "smem") and sw & cr:
            need = max(need, 1)
    if p.kind == "salu" and "m0" in pw and (c.kind == "dma" or "m0" in cr):
        need = max(need, 1)
    if p.kind == "salu" and "exec" in pw and vec_c and getattr(c, "dpp", False):
        need = max(need, 1)
    if p.kind == "vm_st" and getattr(p, "wide", False) and set(p.data) & cw:
        need = max(need, 2)
    return need


def pad_hazards(paths, auto=True):
    added = 0
    for _ in range(200):
        fix = None
        for path in paths:
            window = []
            for blk in path:
                for i, ins in enumerate(blk.ins):
                    if ins.kind not in ("label", "dir", "pwait", "wait", "nop", "barrier"):
                        dist = 0
                        for p in reversed(window):
                            need = required_gap(p, ins)
                            if need > dist:
                                fix = (blk, i, need - dist, p, ins)
                                break
                            dist += _states(p)
                            if dist >= 12:
                                break
                        if fix:
                            break
                    window.append(ins)
                    if len(window) > 40:
                        del window[0]
                if fix:
                    break
            if fix:
                break
        if not fix:
            return added
        blk, i, n, p, ins = fix
        if not auto:
            raise RuntimeError(f"hazard in {blk.name}[{i}]: {p.text} -> {ins.text} short by {n}")
        blk.ins.insert(i, Ins(f"s_nop {n - 1}"))
        blk.ins[i].why = f"{p.op}->{ins.op}"
        added += 1
    raise RuntimeError("hazard padding did not converge")


def _pad_many(paths):
    total = 0
    while True:
        try:
            return total + pad_hazards(paths)
        except RuntimeError as e:
            if "converge" not in str(e):
                raise
            total += 200


def finalize(blocks, paths):
    resolve_waits(paths)
    _pad_many(paths)
    resolve_waits(paths, auto=False)
    out = []
    for blk in blocks:
        for ins in blk.ins:
            if ins.kind == "pwait":
                parts = []
                if ins.vm is not None:
                    parts.append(f"vmcnt({ins.vm})")
                if ins.lg is not None:
                    parts.append(f"lgkmcnt({ins.lg})")
                if parts:
                    out.append("  s_waitcnt " + " ".join(parts))
            elif ins.kind == "label":
                out.append(ins.text)
            else:
                out.append("  " + ins.text)
    return "\n".join(out)


class Fill:
    def __init__(self, ins, lo=0, hi=None, tag=None):
        self.ins = ins if isinstance(ins, Ins) else Ins(ins, tag)
        self.lo, self.hi = lo, hi


def weave(blk, spine, vec, non, budget=8, flush=True):
    vec, non = list(vec), list(non)
    for k, m in enumerate(spine):
        for q in (non, vec):
            last = max((j for j, f in enumerate(q) if f.hi is not None and f.hi <= k), default=-1)
            for f in q[: last + 1]:
                blk(f.ins)
            del q[: last + 1]
        blk(m)
        if non and non[0].lo <= k:
            blk(non.pop(0).ins)
        left = budget
        while vec and vec[0].lo <= k and vec[0].ins.cost <= left:
            left -= vec[0].ins.cost
            blk(vec.pop(0).ins)
    if flush:
        for f in non + vec:
            blk(f.ins)
        return [], []
    return vec, non


def descriptor(name, vgpr, sgpr, accum):
    return f""".amdhsa_kernel {name}
  .amdhsa_next_free_vgpr {vgpr}
  .amdhsa_next_free_sgpr {sgpr}
  .amdhsa_accum_offset {accum}
  .amdhsa_group_segment_fixed_size 0
  .amdhsa_kernarg_size 104
  .amdhsa_user_sgpr_count 2
  .amdhsa_user_sgpr_kernarg_segment_ptr 1
  .amdhsa_system_sgpr_workgroup_id_x 1
.end_amdhsa_kernel"""


def entry(name):
    return f".globl {name}\n.p2align 8\n.type {name},@function\n{name}:"
```

```python
from asmlib import *

KA_X, KA_K, KA_V, KA_WQ, KA_WO = 0, 8, 16, 24, 32
KA_WR, KA_WG, KA_WU, KA_WD, KA_OUT, KA_DBG, KA_WS = 48, 56, 64, 72, 80, 88, 96

WS_XF = 0x0
WS_RK = 0x280000
WS_TOP = 0x282000
WS_H = 0x283000
WS_YP = 0x290000
WS_WOF = 0x300000
WS_OF = 0x800000
WS_END = 0x1800000

X_BYTES = 2048 * 640 * 2
KV_HEAD_BYTES = 2048 * 128 * 2
W_BYTES = 640 * 4096 * 2
WF_BYTES = 640 * 1728 * 2

LOG2E = 1.4426950408889634


def fbits(x):
    import struct
    return "0x%08x" % struct.unpack("<I", struct.pack("<f", x))[0]


def srd(b, d, ptr, size, off=None):
    if off is None:
        b(f"s_mov_b32 s{d}, s{ptr}\ns_mov_b32 s{d+1}, s{ptr+1}")
    else:
        b(f"s_add_u32 s{d}, s{ptr}, {off}\ns_addc_u32 s{d+1}, s{ptr+1}, 0")
    b(f"s_mov_b32 s{d+2}, {size}\ns_mov_b32 s{d+3}, 0x20000")


def bf16_round(dst, src):
    return [f"v_cvt_pk_bf16_f32 {dst}, {src}, {src}", f"v_lshlrev_b32 {dst}, 16, {dst}"]


def row_reduce(op, reg):
    return [f"{op}_dpp {reg}, {reg}, {reg} row_ror:{n} row_mask:0xf bank_mask:0xf" for n in (8, 4, 2, 1)]


def cross_rows(op, reg, tmp):
    return [f"v_mov_b32 {tmp}, {reg}", f"v_permlane16_swap_b32 {reg}, {tmp}", f"{op} {reg}, {reg}, {tmp}",
            f"v_mov_b32 {tmp}, {reg}", f"v_permlane32_swap_b32 {reg}, {tmp}", f"{op} {reg}, {reg}, {tmp}"]


def interleave(*lists):
    out = []
    n = max(len(x) for x in lists)
    for i in range(n):
        for x in lists:
            if i < len(x):
                out.append(x[i])
    return out


def top8(keys, nkeys, tmp, s_prev, s_t, s_out):
    L = [f"s_mov_b32 s{s_prev}, -1"]
    for e in range(8):
        acc = tmp
        for i in range(0, nkeys, 2):
            t0, t1 = tmp + 1 + (i % 4), tmp + 2 + (i % 4)
            L.append(f"v_sub_u32 v{t0}, s{s_prev}, v{keys+i}")
            L.append(f"v_sub_u32 v{t1}, s{s_prev}, v{keys+i+1}")
            L.append(f"v_min_u32 v{acc}, v{t0}, v{t1}" if i == 0 else f"v_min3_u32 v{acc}, v{acc}, v{t0}, v{t1}")
        L += row_reduce("v_min_u32", f"v{acc}")
        for k in range(4):
            L.append(f"v_readlane_b32 s{s_t+k}, v{acc}, {16*k}")
        L.append(f"s_min_u32 s{s_t}, s{s_t}, s{s_t+1}")
        L.append(f"s_min_u32 s{s_t+2}, s{s_t+2}, s{s_t+3}")
        L.append(f"s_min_u32 s{s_t}, s{s_t}, s{s_t+2}")
        L.append(f"s_sub_u32 s{s_out+e}, s{s_prev}, s{s_t}")
        L.append(f"s_sub_u32 s{s_prev}, s{s_out+e}, 1")
    return L


def silu(dst, src, t):
    return [f"v_mul_f32 {t}, {fbits(-LOG2E)}, {src}", f"v_exp_f32 {t}, {t}", f"v_add_f32 {t}, 1.0, {t}",
            f"v_rcp_f32 {t}, {t}", f"v_mul_f32 {dst}, {src}, {t}"]


def code_prefetch(b, s_pc, vtmp, vdst, label, nbytes):
    b(f"s_getpc_b64 s[{s_pc}:{s_pc+1}]")
    b(f"{label}_pc:")
    b(f"s_add_u32 s{s_pc}, s{s_pc}, {label}-{label}_pc\ns_addc_u32 s{s_pc+1}, s{s_pc+1}, 0")
    b(f"v_lshlrev_b32 v{vtmp}, 4, v0")
    for k in range((nbytes + 4095) // 4096):
        b(f"global_load_dwordx4 v[{vdst}:{vdst+3}], v{vtmp}, s[{s_pc}:{s_pc+1}]", tag="pf")
        b.ins[-1].wr = []
        b(f"v_add_u32 v{vtmp}, 0x1000, v{vtmp}")
```

```python
from common import *

NAME = "attn_kernel"
MF = "v_mfma_f32_16x16x32_bf16"

Q0, NEG0, L0 = 128, 192, 208
KA, VA, WA = 212, 216, 224
DK, DV, DW = 232, 236, 238
XO, OO, T = 242, 244, 245
KF, VF = 128, 160
SRD_K, SRD_V, SRD_W, SRD_WS = 12, 16, 20, 24
S_W, S_M0, S_KV, S_X, S_WQ, S_CNT, S_O, S_C = 3, 28, 29, 30, 31, 32, 33, 34
VBASE = 65536
FLAG_LDS = 131072
SCALE = LOG2E / 128 ** 0.5
SUM_LIMIT = 2.0 ** 60


def G(buf, ks2, qb):
    return buf * 64 + (ks2 * 4 + qb) * 8


def S(buf, kb, qb):
    return G(buf, kb >> 1, qb) + (kb & 1) * 4


def Qf(qb, ks):
    return Q0 + (qb * 4 + ks) * 4


def tile(db, qb):
    return (db * 4 + qb) * 4


def Xf(stage, ks2, qb):
    return a((stage % 4) * 32 + (ks2 * 4 + qb) * 4, 4)


def Kf(kb, ks):
    return a(KF + (kb & 1) * 16 + ks * 4, 4)


def Vf(db, ks2, h=None):
    base = VF + (db % 4) * 8 + ks2 * 4
    return a(base, 4) if h is None else a(base + 2 * h, 2)


def k_reads(t, kb):
    return [f"ds_read_b128 {Kf(kb, ks)}, v{KA+ks} offset:{(t % 4) * 16384 + kb * 4096}" for ks in range(4)]


def k_wait(kb):
    return Wait(regs=[Kf(kb, ks) for ks in range(4)])


def v_reads(t, db):
    return [f"ds_read_b64_tr_b16 {Vf(db, ks2, h)}, v{VA+db} offset:{(t % 4) * 16384 + ks2 * 8192 + h * 4096}"
            for ks2 in range(2) for h in range(2)]


def w_reads(s, db):
    return [f"ds_read_b64_tr_b16 {Vf(db, ks2, h)}, v{WA+db} offset:{((s + 2) % 4) * 16384 + ks2 * 8192 + h * 1024}"
            for ks2 in range(2) for h in range(2)]


def v_wait(db):
    return Wait(regs=[Vf(db, 0), Vf(db, 1)])


def dma(kind, slot, soff):
    srd_, base, voff = {"K": (SRD_K, 0, lambda j: DK + j), "V": (SRD_V, VBASE, lambda j: DV + (j & 1)),
                        "W": (SRD_W, VBASE, lambda j: DW + j)}[kind]
    tag = ("K" if kind == "K" else "V") + str(slot)
    L = [Ins(f"s_add_u32 m0, s{S_M0}, {base + slot * 16384}")]
    L += [Ins(f"buffer_load_dwordx4 v{voff(j)}, s[{srd_}:{srd_+3}], s{soff} offen offset:{1024*j} lds", tag)
          for j in range(4)]
    return L


def x_loads(stage):
    return [f"buffer_load_dwordx4 {Xf(stage, ks2, qb)}, v{XO+ks2}, s[{SRD_WS}:{SRD_WS+3}], s{S_X} offen offset:{1024*qb}"
            for ks2 in range(2) for qb in range(4)] + [f"s_add_u32 s{S_X}, s{S_X}, 8192"]


def qk_spine(buf, cfun):
    L = []
    for kb in range(4):
        for qb in range(4):
            for step in range(4):
                ks = step if qb % 2 == 0 else 3 - step
                d = v(S(buf, kb, qb), 4)
                L.append(f"{MF} {d}, {Kf(kb, ks)}, {v(Qf(qb, ks), 4)}, {d if step else cfun(kb, qb)}")
    return L


def pair_spine(dst, bfun, zero):
    L = []
    for db in range(8):
        for qb in range(4):
            for step in range(2):
                ks2 = step if qb % 2 == 0 else 1 - step
                d = dst(db, qb)
                L.append(f"{MF} {d}, {Vf(db, ks2)}, {bfun(ks2, qb)}, {0 if zero and not step else d}")
    return L


def pv_spine(buf, zero=False):
    return pair_spine(lambda db, qb: a(tile(db, qb), 4), lambda ks2, qb: v(G(buf, ks2, qb), 4), zero)


def soft_tile(buf, i):
    kb, qb = i >> 2, i & 3
    x = S(buf, kb, qb)
    p = G(buf, kb >> 1, qb) + (kb & 1) * 2
    ex = lambda k: f"v_exp_f32 v{x+k}, v{x+k}"
    ad = lambda k: f"v_add_f32 v{L0+qb}, v{L0+qb}, v{x+k}"
    cv = lambda k: f"v_cvt_pk_bf16_f32 v{p+k}, v{x+2*k}, v{x+2*k+1}"
    return [(0, ex(0)), (2, ex(1)), (3, ad(0)), (4, ex(2)), (5, ad(1)), (5, cv(0)), (6, ex(3)), (7, ad(2)),
            (9, ad(3)), (9, cv(1))]


def soft_carry(buf):
    items = [(o - 8, x) for o, x in soft_tile(buf, 14) if o >= 8] + soft_tile(buf, 15)
    return sorted(items, key=lambda z: z[0])


def iteration(b, t, first=False, tail_salu=()):
    nb, cb = (t + 1) % 2, t % 2
    spine = qk_spine(nb, lambda kb, qb: v(NEG0 + 4 * qb, 4)) + pv_spine(cb, zero=first)
    items = soft_carry(cb)
    for i in range(15):
        items += [(8 * (i + 1) + o, x) for o, x in soft_tile(nb, i) if 8 * (i + 1) + o < 128]
    items.sort(key=lambda z: z[0])
    vec = [Fill(x, lo=o) for o, x in items]
    non = {}

    def put(slot, x, hi=None):
        assert slot not in non, slot
        non[slot] = Fill(x, lo=slot, hi=hi)

    for kb in range(3):
        for k, x in enumerate(k_reads(t + 1, kb + 1)):
            put(16 * kb + 2 * k, x)
        put(16 * kb + 15, k_wait(kb + 1), hi=16 * kb + 16)
    d = dma("V", (t + 2) % 4, S_KV) + [Ins(f"s_add_u32 s{S_KV}, s{S_KV}, 16384")] + dma("K", (t + 3) % 4, S_KV)
    for slot, x in zip((8, 9, 11, 13, 24, 25, 26, 27, 29, 40, 42), d):
        put(slot, x)
    for db in range(8):
        for k, x in enumerate(v_reads(t, db)):
            put(48 + 8 * db + 2 * k, x)
        put(63 + 8 * db, v_wait(db), hi=64 + 8 * db)
    put(112, Wait(tags=[f"K{(t + 2) % 4}", f"V{(t + 1) % 4}"]))
    put(113, "s_barrier")
    for slot, x in zip((114, 116, 118, 120), k_reads(t + 2, 0)):
        put(slot, x)
    for slot, x in zip((122, 124), tail_salu):
        put(slot, x)
    put(127, k_wait(0))
    left = weave(b, spine, vec, [non[k] for k in sorted(non)], flush=False)
    assert left == ([], []), left


def q_final(ks, qb):
    A, B, q = tile(2 * ks, qb), tile(2 * ks + 1, qb), Qf(qb, ks)
    L = [f"v_mul_f32 v{x+j}, s{S_C}, v{x+j}" for x in (A, B) for j in range(4)]
    L += [f"v_cvt_pk_bf16_f32 v{q+j}, v{x}, v{x+1}" for j, x in enumerate((A, A + 2, B, B + 2))]
    return L, [f"v_permlane16_swap_b32 v{q}, v{q+2}", f"v_permlane16_swap_b32 v{q+1}, v{q+3}"]


def o_final(s, qb, tmp, rcp):
    src = [tile(2 * s, qb) + j for j in range(4)] + [tile(2 * s + 1, qb) + j for j in range(4)]
    L = [f"v_accvgpr_read_b32 v{tmp+j}, a{x}" for j, x in enumerate(src)]
    L += [f"v_mul_f32 v{tmp+j}, v{tmp+j}, v{rcp}" for j in range(8)]
    L += [f"v_cvt_pk_bf16_f32 v{tmp+j}, v{tmp+2*j}, v{tmp+2*j+1}" for j in range(4)]
    so = S_O + 0 if False else None
    off = (s >> 1) * 8192 + qb * 2048 + (s & 1) * 1024
    st = f"buffer_store_dwordx4 {v(tmp,4)}, v{OO}, s[{SRD_WS}:{SRD_WS+3}], s{40 + off // 4096} offen offset:{off % 4096}"
    return L, st


def row_sums():
    L = interleave(*[cross_rows("v_add_f32", f"v{L0+qb}", f"v{T+qb}") for qb in range(4)])
    L += [f"v_rcp_f32 v{NEG0+4*qb}, v{L0+qb}" for qb in range(4)]
    return L


def setup(b):
    b("s_cmp_ge_u32 s2, 256\ns_cbranch_scc1 attn_end")
    b(f"s_load_dwordx4 s[4:7], s[0:1], {KA_K}\ns_load_dwordx2 s[8:9], s[0:1], {KA_WQ}\ns_load_dwordx2 s[10:11], s[0:1], {KA_WS}")
    LANE, R, C, GG = T, T + 1, T + 2, T + 3
    t0, t1 = T + 4, T + 5
    b(f"v_lshrrev_b32 v{t0}, 6, v0\nv_and_b32 v{LANE}, 63, v0")
    b(f"v_readfirstlane_b32 s{S_W}, v{t0}")
    b("s_and_b32 s36, s2, 7\ns_lshl_b32 s36, s36, 2\ns_lshr_b32 s37, s2, 6\ns_add_u32 s36, s36, s37")
    b(f"s_bfe_u32 s37, s2, 0x30003\ns_lshl_b32 s37, s37, 2\ns_add_u32 s37, s37, s{S_W}")
    b(f"s_lshl_b32 s{S_M0}, s{S_W}, 12")
    b(f"v_lshlrev_b32 v{XO}, 4, v{LANE}\nv_add_u32 v{XO+1}, 0x1000, v{XO}")
    b(f"s_mul_i32 s{S_X}, s37, 81920")
    b(f"v_lshrrev_b32 v{GG}, 4, v{LANE}\nv_and_b32 v{C}, 15, v{LANE}")
    b(f"s_lshl_b32 s38, s{S_W}, 17\nv_lshlrev_b32 v{t0}, 13, v{GG}\nv_add_u32 v{t0}, s38, v{t0}")
    for j in range(4):
        b(f"v_or_b32 v{t1}, {(j >> 1) << 2}, v{GG}\nv_lshlrev_b32 v{t1}, 1, v{t1}\nv_xor_b32 v{t1}, v{t1}, v{C}")
        b(f"v_lshl_add_u32 v{DW+j}, v{t1}, 4, v{t0}")
        if j:
            b(f"v_add_u32 v{DW+j}, {j * (32768 - 1024)}, v{DW+j}")
    b("s_waitcnt lgkmcnt(0)")
    b("s_lshl_b32 s38, s36, 8")
    srd(b, SRD_W, 8, f"{W_BYTES}", "s38")
    b(f"s_sub_u32 s{SRD_W+2}, s{SRD_W+2}, s38")
    srd(b, SRD_WS, 10, WS_END)
    b(f"s_mov_b32 s{S_WQ}, 0")
    for st in range(4):
        b.extend(dma("W", (st + 2) % 4, S_WQ))
        b(f"s_add_u32 s{S_WQ}, s{S_WQ}, 0x80000")
        b.extend(x_loads(st))
    b("s_lshl_b32 s38, s36, 19")
    srd(b, SRD_K, 4, KV_HEAD_BYTES, "s38")
    srd(b, SRD_V, 6, KV_HEAD_BYTES, "s38")
    b(f"v_lshlrev_b32 v{t0}, 8, v{GG}\nv_add_u32 v{t0}, s{S_M0}, v{t0}")
    for j in range(4):
        b(f"v_add_u32 v{t1}, {4*j}, v{GG}\nv_xor_b32 v{t1}, v{t1}, v{C}\nv_lshl_add_u32 v{DK+j}, v{t1}, 4, v{t0}")
    for j in range(2):
        b(f"v_add_u32 v{t1}, {4*j}, v{GG}\nv_lshlrev_b32 v{t1}, 1, v{t1}\nv_xor_b32 v{t1}, v{t1}, v{C}")
        b(f"v_lshl_add_u32 v{DV+j}, v{t1}, 4, v{t0}")
    b(f"v_lshrrev_b32 v{t0}, 1, v{GG}\nv_and_b32 v{t1}, 1, v{GG}\nv_lshl_or_b32 v{t0}, v{t1}, 1, v{t0}")
    b(f"v_xor_b32 v{t0}, v{t0}, v{C}\nv_lshlrev_b32 v{t0}, 4, v{t0}\nv_lshl_add_u32 v{KA}, v{C}, 8, v{t0}")
    for ks in range(1, 4):
        b(f"v_xor_b32 v{KA+ks}, {64*ks}, v{KA}")
    b(f"v_bfe_u32 v{R}, v{LANE}, 2, 2\nv_and_b32 v{C}, 3, v{LANE}\nv_lshlrev_b32 v{C}, 3, v{C}\nv_add_u32 v{C}, {VBASE}, v{C}")
    b(f"v_lshl_add_u32 v{t0}, v{GG}, 2, v{R}\nv_and_b32 v{t1}, 7, v{t0}\nv_lshl_add_u32 v{t1}, v{t1}, 5, v{C}")
    b(f"v_lshl_add_u32 v{VA}, v{t0}, 8, v{t1}")
    b(f"v_lshl_add_u32 v{t0}, v{GG}, 3, v{R}\nv_and_b32 v{t1}, 1, v{GG}\nv_lshl_add_u32 v{t1}, v{t1}, 2, v{R}")
    b(f"v_lshl_add_u32 v{t1}, v{t1}, 5, v{C}\nv_lshl_add_u32 v{WA}, v{t0}, 8, v{t1}")
    for db in range(1, 8):
        b(f"v_xor_b32 v{VA+db}, {32*db}, v{VA}\nv_xor_b32 v{WA+db}, {32*db}, v{WA}")
    b(f"v_mov_b32 v{OO}, v{XO}")
    b(f"s_lshl_b32 s40, s37, 19\ns_lshl_b32 s38, s36, 14\ns_add_u32 s40, s40, s38\ns_add_u32 s40, s40, {WS_OF}")
    for k in range(1, 4):
        b(f"s_add_u32 s{40+k}, s40, {4096*k}")
    b(f"s_mov_b32 s{S_C}, {fbits(SCALE)}\ns_mov_b32 s{S_KV}, 0")
    for qb in range(4):
        b(f"v_mov_b32 v{L0+qb}, 0")


def q_projection(b):
    b(Wait(tags="V2"))
    b("s_barrier")
    b.extend(w_reads(0, 0) + w_reads(0, 1))
    b(Wait(regs=[Xf(0, k, q) for k in range(2) for q in range(4)] + [Vf(0, 0), Vf(0, 1)]))
    vec = []
    for st in range(10):
        spine = pair_spine(lambda db, qb: v(tile(db, qb), 4), lambda ks2, qb: Xf(st, ks2, qb), st == 0)
        non = []
        put = lambda slot, x, hi=None: non.append((slot, len(non), Fill(x, lo=slot, hi=hi)))
        for db in range(6):
            for k, x in enumerate(w_reads(st, db + 2)):
                put(8 * db + 2 * k, x)
        for db in range(7):
            put(8 * db + 7, v_wait(db + 1), hi=8 * db + 8)
        if 1 <= st <= 6:
            for slot, x in zip((1, 3, 5, 9, 11, 13, 17, 19, 21), x_loads(st + 3)):
                put(slot, x)
        if 5 <= st <= 7:
            d = dma("K", st - 5, S_KV) + [Ins(f"s_add_u32 s{S_KV}, s{S_KV}, 16384")]
            for slot, x in zip((25, 27, 29, 33, 35, 37), d):
                put(slot, x)
        if st == 7:
            put(41, f"s_mov_b32 s{S_KV}, 0")
        put(43, Wait(tags=f"V{(st + 3) % 4}" if st < 9 else "K0"))
        put(45, "s_barrier")
        nxt = w_reads(st + 1, 0) + w_reads(st + 1, 1) if st < 9 else k_reads(0, 0)
        for slot, x in zip((48, 50, 52, 54, 56, 58, 60, 62), nxt):
            put(slot, x)
        if 1 <= st <= 6:
            d = dma("W", (st + 5) % 4, S_WQ) + [Ins(f"s_add_u32 s{S_WQ}, s{S_WQ}, 0x80000")]
        elif st in (7, 8):
            d = dma("V", st - 7, S_KV) + [Ins(f"s_add_u32 s{S_KV}, s{S_KV}, 16384")]
        else:
            d = []
        for slot, x in zip((47, 49, 51, 53, 57, 59), d):
            put(slot, x)
        if st < 9:
            put(63, Wait(regs=[Xf(st + 1, k, q) for k in range(2) for q in range(4)] + [Vf(0, 0), Vf(0, 1)]))
        else:
            put(63, k_wait(0))
            for ks in range(4):
                for qb in range(4):
                    L, sw = q_final(ks, qb)
                    lo = 16 * ks + 8 + 2 * qb + 1 + 4
                    vec += [Fill(x, lo=lo) for x in L[:12]]
                    vec += pend if ks or qb else []
                    pend = [Fill(x, lo=lo) for x in sw]
            vec += pend
        vec, rest = weave(b, spine, vec, [x[2] for x in sorted(non, key=lambda z: z[:2])], flush=False)
        b.extend([f.ins for f in rest])
    return vec


def first_scores(b, carry):
    b.extend([f.ins for f in carry])
    spine = qk_spine(0, lambda kb, qb: 0 if kb < 2 else v(NEG0 + 4 * qb, 4))
    mx = []
    for qb in range(4):
        x, m = S(0, 0, qb), NEG0 + 4 * qb
        mx.append([f"v_max3_f32 v{m}, v{x}, v{x+1}, v{x+2}", f"v_max_f32 v{m}, v{m}, v{x+3}"]
                  + cross_rows("v_max_f32", f"v{m}", f"v{T+qb}")
                  + [f"v_sub_f32 v{m+j}, 0, v{m}" for j in (1, 2, 3, 0)])
    vec = [Fill(x, lo=11, hi=31) for x in interleave(mx[0], mx[1])]
    vec += [Fill(x, lo=19, hi=31) for x in interleave(mx[2], mx[3])]
    for i in range(15):
        kb, qb = i >> 2, i & 3
        lo = 4 * i + 7
        if kb < 2:
            x = S(0, kb, qb)
            vec += [Fill(f"v_add_f32 v{x+j}, v{NEG0+4*qb}, v{x+j}", lo=lo) for j in range(4)]
        vec += [Fill(x, lo=lo) for o, x in soft_tile(0, i) if i < 14 or o < 8]
    non = []
    for kb in range(3):
        non += [Fill(x, lo=16 * kb + 2 * k) for k, x in enumerate(k_reads(0, kb + 1))]
        non.append(Fill(k_wait(kb + 1), lo=16 * kb + 15, hi=16 * kb + 16))
    non += [Fill(Wait(tags=["K1", "V0"]), lo=48), Fill("s_barrier", lo=49)]
    non += [Fill(x, lo=50 + 2 * k) for k, x in enumerate(k_reads(1, 0))]
    non.append(Fill(k_wait(0), lo=63))
    weave(b, spine, vec, non)


def last_values(b):
    b.extend(v_reads(31, 0) + v_reads(31, 1))
    b.extend([x for _, x in soft_carry(1)])
    b.extend(row_sums())
    b(f"s_mov_b32 s38, {fbits(SUM_LIMIT)}")
    b(f"v_max3_f32 v{T}, v{L0}, v{L0+1}, v{L0+2}\nv_max_f32 v{T}, v{T}, v{L0+3}")
    b(f"v_add_f32 v{T+1}, v{L0}, v{L0+1}\nv_add_f32 v{T+2}, v{L0+2}, v{L0+3}\nv_add_f32 v{T+1}, v{T+1}, v{T+2}")
    b(f"v_cmp_nlt_f32 vcc, v{T+1}, s38")
    b(f"v_cndmask_b32_e64 v{T}, 0, 1, vcc\nv_lshrrev_b32 v{T+1}, 2, v{XO}\ns_lshl_b32 s38, s{S_W}, 8")
    b(f"v_add_u32 v{T+1}, s38, v{T+1}\nv_add_u32 v{T+1}, {FLAG_LDS}, v{T+1}")
    b(f"ds_write_b32 v{T+1}, v{T}")
    b(v_wait(0))
    spine = pv_spine(1)
    non, vec = [], []
    for db in range(6):
        non += [(8 * db + 2 * k, Fill(x, lo=8 * db + 2 * k)) for k, x in enumerate(v_reads(31, db + 2))]
    non += [(8 * db + 7, Fill(v_wait(db + 1), lo=8 * db + 7, hi=8 * db + 8)) for db in range(7)]
    non = [x[1] for x in sorted(non, key=lambda z: z[0])]
    n = 0
    for s_ in range(4):
        for qb in range(4):
            L, st = o_final(s_, qb, 8 * (n % 8), NEG0 + 4 * qb)
            lo = 16 * s_ + 8 + 2 * qb + 1 + 4
            vec += [Fill(x, lo=lo) for x in L] + [Fill(st, lo=lo)]
            n += 1
    weave(b, spine, vec, non)


def range_check(b):
    b(f"v_lshlrev_b32 v{T+1}, 0, v{XO}\nv_add_u32 v{T+1}, {FLAG_LDS}, v{T+1}")
    b("s_waitcnt lgkmcnt(0)\ns_barrier")
    b(f"ds_read_b128 {v(T+3,4)}, v{T+1}")
    b(f"v_or3_b32 v{T+3}, v{T+3}, v{T+4}, v{T+5}\nv_or_b32 v{T+3}, v{T+3}, v{T+6}")
    b(f"v_cmp_ne_u32 vcc, 0, v{T+3}")
    b("s_cbranch_vccz attn_end")


def fallback(pre, loop, post):
    M0_ = T + 4
    b = pre
    b("s_waitcnt vmcnt(0)")
    for i in range(128):
        b(f"v_accvgpr_write_b32 a{i}, 0")
    for qb in range(4):
        b(f"v_mov_b32 v{L0+qb}, 0\nv_mov_b32 v{M0_+qb}, 0xff800000")
    b(f"s_mov_b32 s{S_KV}, 0")
    b = loop
    b("attn_slow:\ns_barrier")
    b.extend(dma("K", 0, S_KV) + dma("V", 0, S_KV))
    b("s_waitcnt vmcnt(0)\ns_barrier")
    spine = qk_spine(0, lambda kb, qb: 0)
    for kb in range(4):
        b.extend(k_reads(0, kb))
        b.extend(spine[16 * kb:16 * kb + 16])
    for qb in range(4):
        m, al, t = NEG0 + 4 * qb, NEG0 + 4 * qb + 1, T
        xs = [S(0, kb, qb) + j for kb in range(4) for j in range(4)]
        b(f"v_mov_b32 v{m}, v{M0_+qb}")
        for k in range(0, 16, 2):
            b(f"v_max3_f32 v{m}, v{m}, v{xs[k]}, v{xs[k+1]}")
        b.extend(cross_rows("v_max_f32", f"v{m}", f"v{t}"))
        b(f"v_sub_f32 v{al}, v{M0_+qb}, v{m}\nv_exp_f32 v{al}, v{al}\nv_mov_b32 v{M0_+qb}, v{m}")
        b(f"v_mul_f32 v{L0+qb}, v{L0+qb}, v{al}")
        for x in xs:
            b(f"v_sub_f32 v{x}, v{x}, v{m}")
        for kb in range(4):
            b.extend([x for _, x in soft_tile(0, 4 * kb + qb)])
        for db in range(8):
            o = tile(db, qb)
            b.extend([f"v_accvgpr_read_b32 v{64+j}, a{o+j}" for j in range(4)])
            b.extend([f"v_mul_f32 v{64+j}, v{64+j}, v{al}" for j in range(4)])
            b.extend([f"v_accvgpr_write_b32 a{o+j}, v{64+j}" for j in range(4)])
    spine = pv_spine(0)
    for db in range(8):
        b.extend(v_reads(0, db))
        b.extend(spine[8 * db:8 * db + 8])
    b(f"s_add_u32 s{S_KV}, s{S_KV}, 16384\ns_cmp_lt_u32 s{S_KV}, {KV_HEAD_BYTES}\ns_cbranch_scc1 attn_slow")
    b = post
    b.extend(row_sums())
    n = 0
    for s_ in range(4):
        for qb in range(4):
            L, st = o_final(s_, qb, 8 * (n % 8), NEG0 + 4 * qb)
            b.extend(L + [st])
            n += 1


def build():
    names = ("setup", "qproj", "first", "peel", "loop", "last", "fpre", "floop", "fpost", "end")
    blk = {n: Block(n) for n in names}
    setup(blk["setup"])
    carry = q_projection(blk["qproj"])
    first_scores(blk["first"], carry)
    for t in range(3):
        iteration(blk["peel"], t, first=(t == 0))
    blk["peel"](f"s_mov_b32 s{S_CNT}, 7")
    b = blk["loop"]
    b("attn_loop:")
    for t in range(3, 7):
        iteration(b, t, tail_salu=[f"s_sub_u32 s{S_CNT}, s{S_CNT}, 1", f"s_cmp_lg_u32 s{S_CNT}, 0"] if t == 6 else [])
    b("s_cbranch_scc1 attn_loop")
    last_values(blk["last"])
    range_check(blk["last"])
    fallback(blk["fpre"], blk["floop"], blk["fpost"])
    blk["end"]("attn_end:\ns_endpgm")
    p = lambda *n: [blk[x] for x in n]
    paths = [p("setup", "qproj", "first", "peel", "loop", "loop", "last", "fpre", "floop", "floop", "fpost", "end")]
    text = finalize(p(*names), paths)
    return dict(name=NAME, text=entry(NAME) + "\n" + text, desc=descriptor(NAME, 512, 64, 256),
                grid=256, block=256, lds=FLAG_LDS + 1024, blocks=blk)
```

```python
from common import *


def tr_addr_natural(b, dst, lane, tmp, row_bytes_log2):
    b(f"v_lshrrev_b32 v{dst}, 4, v{lane}\nv_lshlrev_b32 v{dst}, 3, v{dst}")
    b(f"v_bfe_u32 v{tmp}, v{lane}, 2, 2\nv_add_u32 v{dst}, v{dst}, v{tmp}")
    b(f"v_lshlrev_b32 v{dst}, {row_bytes_log2}, v{dst}")


def build_ffn1():
    NAME = "ffn1_kernel"
    b = Block("main")
    end = Block("end")
    b("s_cmp_ge_u32 s2, 216\ns_cbranch_scc1 ffn1_end")
    b(f"s_load_dwordx4 s[4:7], s[0:1], {KA_WG}\ns_load_dwordx2 s[10:11], s[0:1], {KA_WS}")
    b("v_lshrrev_b32 v1, 6, v0\nv_and_b32 v0, 63, v0")
    b("v_readfirstlane_b32 s3, v1")
    b("s_and_b32 s28, s2, 7\ns_mul_i32 s28, s28, 27\ns_lshr_b32 s29, s2, 3\ns_add_u32 s28, s28, s29")
    b("s_waitcnt lgkmcnt(0)")
    srd(b, 12, 4, WF_BYTES)
    srd(b, 16, 6, WF_BYTES)
    srd(b, 24, 10, WS_OF)
    KEYS = 8
    b(f"v_lshlrev_b32 v1, 4, v0\ns_mov_b32 s29, {WS_RK}\ns_mov_b32 s30, {WS_RK+4096}")
    for i in range(8):
        b(f"buffer_load_dwordx4 {v(KEYS+4*i,4)}, v1, s[24:27], s{29+i//4} offen offset:{1024*(i%4)}")
    b("s_mul_i32 s31, s3, 160*3456\ns_lshl_b32 s32, s28, 4\ns_add_u32 s31, s31, s32")
    b("s_mul_i32 s33, s3, 6144\nv_mul_u32_u24 v2, 0xd80, v0")
    for i in range(3):
        for m in range(2):
            b(f"s_add_u32 m0, s33, {m*3072+i*1024}")
            b(f"buffer_load_dwordx4 v2, s[{12+4*m}:{15+4*m}], s31 offen lds", tag="w")
        b(f"s_add_u32 s31, s31, {64*3456}")
    b.extend(top8(KEYS, 32, 40, 34, 36, 40))
    b("v_mov_b32 v3, 0")
    for e in range(8):
        b(f"s_and_b32 s{48+e}, s{40+e}, 0xffff\ns_sub_u32 s{48+e}, 0xffff, s{48+e}")
        b(f"v_writelane_b32 v3, s{48+e}, {e}")
    b("v_mov_b32 v4, v3\nv_permlane16_swap_b32 v3, v4\nv_mov_b32 v4, v3\nv_permlane32_swap_b32 v3, v4")
    b("v_lshrrev_b32 v4, 6, v3\nv_mul_u32_u24 v4, 0x14000, v4\nv_bfe_u32 v5, v3, 4, 2\nv_lshl_add_u32 v4, v5, 10, v4")
    b("v_and_b32 v5, 15, v3\nv_lshl_add_u32 v4, v5, 4, v4\nv_lshrrev_b32 v5, 4, v0\nv_lshl_add_u32 v4, v5, 8, v4")
    b("s_mul_i32 s31, s3, 20480")
    XB, WA, ACC = 8, 28, 48
    for k in range(5):
        b(f"buffer_load_dwordx4 {v(XB+4*k,4)}, v4, s[24:27], s31 offen")
        b("s_add_u32 s31, s31, 4096")
    b("s_cmp_lg_u32 s28, 0\ns_cbranch_scc1 ffn1_notop")
    b("v_mov_b32 v52, 0")
    for e in range(8):
        b(f"v_writelane_b32 v52, s{40+e}, {e}")
    b("v_and_b32 v52, 0xffff0000, v52\nv_ashrrev_i32 v53, 31, v52\nv_not_b32 v53, v53")
    b("v_or_b32 v53, 0x80000000, v53\nv_xor_b32 v52, v52, v53\nv_and_b32 v52, 0xffff0000, v52")
    b(f"v_mul_f32 v52, {fbits(-LOG2E)}, v52\nv_exp_f32 v52, v52\nv_add_f32 v52, 1.0, v52\nv_rcp_f32 v52, v52")
    b.extend(bf16_round("v52", "v52"))
    b(f"v_lshlrev_b32 v53, 2, v0\ns_mov_b32 s31, {WS_TOP}")
    b("s_mov_b64 exec, 0xff")
    b("buffer_store_dword v3, v53, s[24:27], s31 offen\nbuffer_store_dword v52, v53, s[24:27], s31 offen offset:32")
    b("s_mov_b64 exec, -1")
    b("ffn1_notop:")
    tr_addr_natural(b, 5, 0, 6, 4)
    b("v_bfe_u32 v6, v0, 1, 1\nv_mul_u32_u24 v6, 0xc00, v6\nv_add_u32 v5, v5, v6")
    b("v_and_b32 v6, 1, v0\nv_lshl_add_u32 v5, v6, 3, v5\nv_add_u32 v5, s33, v5")
    b("s_waitcnt vmcnt(0)")
    for k in range(5):
        for h in range(2):
            b(f"ds_read_b64_tr_b16 {v(WA+4*k+2*h,2)}, v5 offset:{512*k+64*h}")
    for k in range(5):
        b(f"v_mfma_f32_16x16x32_bf16 {v(ACC,4)}, {v(WA+4*k,4)}, {v(XB+4*k,4)}, {v(ACC,4) if k else 0}")
    PART = 24576
    b(f"s_lshl_b32 s31, s3, 10\nv_add_u32 v6, s31, v1")
    b(f"ds_write_b128 v6, {v(ACC,4)} offset:{PART}")
    b("s_waitcnt lgkmcnt(0)\ns_barrier")
    b("s_cmp_lg_u32 s3, 0\ns_cbranch_scc1 ffn1_end")
    b("v_and_b32 v6, 31, v0\nv_lshlrev_b32 v6, 4, v6")
    for w in range(4):
        for m in range(2):
            b(f"ds_read_b128 {v(8+16*m+4*w,4)}, v6 offset:{PART+1024*w+512*m}")
    for m in range(2):
        for j in range(4):
            x = 8 + 16 * m + j
            b(f"v_add_f32 v{x}, v{x}, v{x+4}\nv_add_f32 v{x+8}, v{x+8}, v{x+12}\nv_add_f32 v{x}, v{x}, v{x+8}")
            b.extend(bf16_round(f"v{x}", f"v{x}"))
    for j in range(4):
        b.extend(silu(f"v{8+j}", f"v{8+j}", f"v{12+j}"))
        b.extend(bf16_round(f"v{8+j}", f"v{8+j}"))
        b(f"v_mul_f32 v{8+j}, v{8+j}, v{24+j}")
    b("v_cvt_pk_bf16_f32 v8, v8, v9\nv_cvt_pk_bf16_f32 v9, v10, v11")
    b("v_and_b32 v6, 7, v0\nv_mul_u32_u24 v6, 0xd80, v6\nv_bfe_u32 v7, v0, 4, 1\nv_lshl_add_u32 v6, v7, 3, v6")
    b(f"s_lshl_b32 s31, s28, 4\ns_add_u32 s31, s31, {WS_H}")
    b("s_mov_b64 exec, 0x00ff00ff")
    b("buffer_store_dwordx2 v[8:9], v6, s[24:27], s31 offen")
    end("ffn1_end:\ns_endpgm")
    text = finalize([b, end], [[b, end]])
    return dict(name=NAME, text=entry(NAME) + "\n" + text, desc=descriptor(NAME, 64, 64, 64),
                grid=216, block=256, lds=28672)


def build_ffn2():
    NAME = "ffn2_kernel"
    b = Block("main")
    end = Block("end")
    b("s_cmp_ge_u32 s2, 240\ns_cbranch_scc1 ffn2_end")
    b(f"s_load_dwordx2 s[4:5], s[0:1], {KA_WD}\ns_load_dwordx2 s[10:11], s[0:1], {KA_WS}")
    b("v_lshrrev_b32 v1, 6, v0\nv_and_b32 v0, 63, v0")
    b("v_readfirstlane_b32 s3, v1")
    b("s_and_b32 s28, s2, 7\ns_mul_i32 s28, s28, 30\ns_lshr_b32 s29, s2, 3\ns_add_u32 s28, s28, s29")
    b("s_mul_i32 s29, s28, 1639\ns_lshr_b32 s29, s29, 16")
    b("s_mul_i32 s30, s29, 40\ns_sub_u32 s30, s28, s30")
    b("s_waitcnt lgkmcnt(0)")
    srd(b, 12, 4, WF_BYTES)
    srd(b, 24, 10, WS_OF)
    b("s_min_u32 s3, s3, 2")
    b("s_mul_i32 s31, s29, 3\ns_add_u32 s31, s31, s3\ns_mul_i32 s31, s31, 96")
    b("s_mul_i32 s32, s31, 1280\ns_lshl_b32 s33, s30, 5\ns_add_u32 s32, s32, s33")
    b("v_lshrrev_b32 v2, 1, v0\nv_mul_u32_u24 v2, 0x500, v2\nv_and_b32 v3, 1, v0\nv_lshl_add_u32 v2, v3, 4, v2")
    b("v_readfirstlane_b32 s34, v1")
    b("s_mul_i32 s33, s34, 3072")
    for k in range(3):
        b(f"s_add_u32 m0, s33, {1024*k}")
        b("buffer_load_dwordx4 v2, s[12:15], s32 offen lds")
        b(f"s_add_u32 s32, s32, {32*1280}")
    b("v_and_b32 v3, 7, v0\nv_mul_u32_u24 v3, 0xd80, v3\nv_lshrrev_b32 v4, 4, v0\nv_lshl_add_u32 v3, v4, 4, v3")
    b(f"s_lshl_b32 s31, s31, 1\ns_add_u32 s31, s31, {WS_H}")
    for k in range(3):
        b(f"buffer_load_dwordx4 {v(8+4*k,4)}, v3, s[24:27], s31 offen offset:{64*k}")
    tr_addr_natural(b, 5, 0, 6, 5)
    b("v_and_b32 v6, 3, v0\nv_lshl_add_u32 v5, v6, 3, v5\nv_add_u32 v5, s33, v5")
    b("s_waitcnt vmcnt(0)")
    for k in range(3):
        for h in range(2):
            b(f"ds_read_b64_tr_b16 {v(20+4*k+2*h,2)}, v5 offset:{1024*k+128*h}")
    for k in range(3):
        b(f"v_mfma_f32_16x16x32_bf16 v[32:35], {v(20+4*k,4)}, {v(8+4*k,4)}, {'v[32:35]' if k else 0}")
    PART = 12288
    b("v_lshlrev_b32 v1, 4, v0\ns_lshl_b32 s31, s34, 10\nv_add_u32 v6, s31, v1")
    b(f"ds_write_b128 v6, v[32:35] offset:{PART}")
    b("s_waitcnt lgkmcnt(0)\ns_barrier")
    b("s_cmp_lg_u32 s34, 0\ns_cbranch_scc1 ffn2_end")
    for w in range(3):
        b(f"ds_read_b128 {v(8+4*w,4)}, v1 offset:{PART+1024*w}")
    for j in range(4):
        b(f"v_add_f32 v{8+j}, v{8+j}, v{12+j}\nv_add_f32 v{8+j}, v{8+j}, v{16+j}")
    b("v_and_b32 v3, 7, v0\nv_mul_u32_u24 v3, 0xa00, v3\nv_lshl_add_u32 v3, v4, 4, v3")
    b(f"s_mul_i32 s31, s29, 20480\ns_lshl_b32 s32, s30, 6\ns_add_u32 s31, s31, s32\ns_add_u32 s31, s31, {WS_YP}")
    b("s_mov_b32 exec_lo, 0x00ff00ff\ns_mov_b32 exec_hi, 0x00ff00ff")
    b("buffer_store_dwordx4 v[8:11], v3, s[24:27], s31 offen")
    end("ffn2_end:\ns_endpgm")
    text = finalize([b, end], [[b, end]])
    return dict(name=NAME, text=entry(NAME) + "\n" + text, desc=descriptor(NAME, 64, 64, 64),
                grid=240, block=256, lds=16384)
```

```python
from common import *

NAME = "out_kernel"

ACC = 0
XR = 80
BV = 90
VB = 110
VA = 114
VO = 117
VW = 118
VR = 121
T = 122
BUF3 = 136
S_B, S_A, S_CNT = 30, 31, 32


def acc(mb, q):
    return ACC + (mb * 4 + q) * 4


def frag(buf, i):
    return v(BUF3 + 4 * i, 4) if buf == 3 else a(buf * 72 + 4 * i, 4)


def group_loads(buf):
    L = []
    order = [("b", 0, 0), ("b", 0, 1), ("a", 0, 0), ("a", 1, 0)]
    order += [("b", q, kk) for q in range(1, 4) for kk in range(2)]
    order += [("a", kk, mb) for mb in range(1, 5) for kk in range(2)]
    for kind, i, j in order:
        if kind == "b":
            L.append(f"buffer_load_dwordx4 {frag(buf, 2*i+j)}, v{VB+i}, s[24:27], s{S_B} offen offset:{1024*j}")
        else:
            f = 5 * i + j
            L.append(f"buffer_load_dwordx4 {frag(buf, 8+f)}, v{VA+f//4}, s[24:27], s{S_A} offen offset:{1024*(f%4)}")
    L += [f"s_add_u32 s{S_B}, s{S_B}, 8192", f"s_add_u32 s{S_A}, s{S_A}, 10240"]
    return L


def group(b, buf, prefetch, vec=(), extra_non=()):
    spine = []
    for mb in range(5):
        for q in range(4):
            for step in range(2):
                kk = step if q % 2 == 0 else 1 - step
                d = v(acc(mb, q), 4)
                spine.append(f"v_mfma_f32_16x16x32_bf16 {d}, {frag(buf, 8+5*kk+mb)}, {frag(buf, 2*q+kk)}, {d}")
    b(Wait(regs=[frag(buf, i) for i in list(range(8)) + [8, 13]]))
    non = [Fill(x) for x in group_loads((buf + 3) % 4)] if prefetch else []
    rest = Fill(Wait(regs=[frag(buf, i) for i in range(18)]), lo=6, hi=8)
    non.insert(min(6, len(non)), rest)
    non += [Fill(x, lo=30) for x in extra_non]
    return weave(b, spine, vec if vec else [], non, flush=False)


def build():
    head, slow, pre, loop, tail, end = (Block(n) for n in ("head", "slow", "pre", "loop", "tail", "end"))
    b = head
    b("s_cmp_ge_u32 s2, 256\ns_cbranch_scc1 out_end")
    b(f"s_load_dwordx2 s[4:5], s[0:1], {KA_X}\ns_load_dwordx2 s[6:7], s[0:1], {KA_OUT}\ns_load_dwordx2 s[8:9], s[0:1], {KA_WS}")
    b(f"v_lshrrev_b32 v{T}, 6, v0\nv_and_b32 v{T+1}, 63, v0")
    b(f"v_readfirstlane_b32 s3, v{T}")
    b("s_and_b32 s10, s2, 7\ns_lshr_b32 s11, s2, 3")
    b("s_lshr_b32 s28, s10, 1\ns_lshl_b32 s28, s28, 3\ns_and_b32 s29, s11, 7\ns_add_u32 s28, s28, s29")
    b("s_and_b32 s29, s10, 1\ns_lshl_b32 s29, s29, 2\ns_lshr_b32 s11, s11, 3\ns_add_u32 s29, s29, s11")
    LANE, N, G = T + 1, T + 2, T + 3
    b(f"v_and_b32 v{N}, 15, v{LANE}\nv_lshrrev_b32 v{G}, 4, v{LANE}\nv_lshlrev_b32 v{VA}, 4, v{LANE}")
    b(f"v_add_u32 v{VA+1}, 0x1000, v{VA}\nv_add_u32 v{VA+2}, 0x2000, v{VA}")
    for q in range(4):
        b(f"s_add_u32 s10, s3, {q}\ns_and_b32 s10, s10, 3\ns_lshl_b32 s11, s10, 11\nv_add_u32 v{VB+q}, s11, v{VA}")
        if q:
            b(f"s_mul_i32 s10, s10, 15360\ns_add_u32 s10, s10, {(q-1)*5120}\nv_add_u32 v{VW+q-1}, s10, v{VA}")
    b(f"s_mul_i32 s10, s3, 15360\nv_add_u32 v{VR}, s10, v{VA}")
    b(f"s_lshl_b32 s{S_B}, s28, 19\ns_lshl_b32 s10, s3, 17\ns_add_u32 s{S_B}, s{S_B}, s10\ns_add_u32 s{S_B}, s{S_B}, {WS_OF}")
    b(f"s_mul_i32 s{S_A}, s29, 655360\ns_mul_i32 s10, s3, 163840\ns_add_u32 s{S_A}, s{S_A}, s10\ns_add_u32 s{S_A}, s{S_A}, {WS_WOF}")
    TOK = T + 4
    b(f"s_lshl_b32 s10, s28, 6\ns_lshl_b32 s11, s3, 4\ns_add_u32 s10, s10, s11\nv_add_u32 v{TOK}, s10, v{N}")
    b(f"v_mul_u32_u24 v{VO}, 0x500, v{TOK}\nv_lshl_add_u32 v{VO}, v{G}, 3, v{VO}\ns_mul_i32 s11, s29, 160\nv_add_u32 v{VO}, s11, v{VO}")
    b("s_waitcnt lgkmcnt(0)")
    srd(b, 24, 8, WS_END)
    srd(b, 12, 4, X_BYTES)
    srd(b, 16, 6, X_BYTES)
    b(f"s_add_u32 s8, s8, {WS_TOP}\ns_addc_u32 s9, s9, 0\ns_load_dwordx8 s[36:43], s[8:9], 0")
    b(f"s_mul_i32 s10, s28, 81920\ns_lshl_b32 s11, s3, 10\ns_add_u32 s10, s10, s11")
    b(f"s_mul_i32 s11, s29, 10\nv_lshrrev_b32 v{T+5}, 1, v{G}\nv_add_u32 v{T+5}, s11, v{T+5}")
    b(f"v_and_b32 v{T+6}, 1, v{G}\nv_lshlrev_b32 v{T+6}, 3, v{T+6}\nv_lshl_add_u32 v{T+6}, v{N}, 4, v{T+6}")
    XN = BUF3
    for mb in range(5):
        b(f"v_lshrrev_b32 v{T+7}, 2, v{T+5}\nv_lshl_add_u32 v{T+7}, v{T+7}, 12, v{T+6}")
        b(f"v_and_b32 v{T+8}, 3, v{T+5}\nv_lshl_add_u32 v{T+7}, v{T+8}, 8, v{T+7}")
        b(f"buffer_load_dwordx2 {v(XN+2*mb,2)}, v{T+7}, s[24:27], s10 offen")
        b(f"v_add_u32 v{T+5}, 2, v{T+5}")
    for g in range(3):
        b.extend(group_loads(g))
    b("s_mov_b32 s33, 0xffff0000")
    for i in range(10):
        b(f"v_lshlrev_b32 v{BV+2*i}, 16, v{XN+i}\nv_and_b32 v{BV+2*i+1}, s33, v{XN+i}")
    for mb in range(5):
        b(f"buffer_load_dwordx2 {v(XR+2*mb,2)}, v{VO}, s[12:15], 0 offen offset:{32*mb}")
    SLOT = T + 5
    b(f"v_mov_b32 v{SLOT}, -1")
    for e in range(8):
        b(f"v_cmp_eq_u32 vcc, s{36+e}, v{TOK}\nv_cndmask_b32_e64 v{SLOT}, v{SLOT}, {e}, vcc")
    b(f"v_cmp_ne_u32 vcc, -1, v{SLOT}\ns_and_saveexec_b64 s[34:35], vcc\ns_cbranch_execz out_noroute")

    b = slow
    b("s_waitcnt vmcnt(28)")
    b(f"v_lshlrev_b32 v{T+6}, 2, v{SLOT}\ns_mov_b32 s10, {WS_TOP+32}")
    b(f"buffer_load_dword v{T+7}, v{T+6}, s[24:27], s10 offen")
    b(f"v_mul_u32_u24 v{T+6}, 0xa00, v{SLOT}\nv_lshl_add_u32 v{T+6}, v{G}, 4, v{T+6}")
    b(f"s_mul_i32 s10, s29, 320\ns_add_u32 s10, s10, {WS_YP}")
    yp = lambda p, mb: (ACC + 4 * (p * 5 + mb)) if p < 4 else (BUF3 + 16 + 4 * ((p - 4) * 5 + mb))
    for p in range(6):
        for mb in range(5):
            b(f"buffer_load_dwordx4 {v(yp(p,mb),4)}, v{T+6}, s[24:27], s10 offen offset:{64*mb}")
        b("s_add_u32 s10, s10, 20480")
    b("s_waitcnt vmcnt(0)")
    for mb in range(5):
        for j in range(4):
            y = yp(0, mb) + j
            for p in range(1, 6):
                b(f"v_add_f32 v{y}, v{y}, v{yp(p,mb)+j}")
            b.extend(bf16_round(f"v{y}", f"v{y}"))
            b(f"v_mul_f32 v{y}, v{y}, v{T+7}")
            b.extend(bf16_round(f"v{y}", f"v{y}"))
            x = BV + 4 * mb + j
            b(f"v_add_f32 v{x}, v{x}, v{y}")
            b.extend(bf16_round(f"v{x}", f"v{x}"))

    b = pre
    b("out_noroute:\ns_mov_b64 exec, s[34:35]")
    for i in range(80):
        b(f"v_mov_b32 v{ACC+i}, 0")
    b(f"s_mov_b32 s{S_CNT}, 3")

    b = loop
    b("out_loop:")
    for g in range(4):
        extra = [f"s_sub_u32 s{S_CNT}, s{S_CNT}, 1", f"s_cmp_lg_u32 s{S_CNT}, 0"] if g == 3 else []
        left = group(b, g, True, extra_non=extra)
        assert left == ([], [])
    b("s_cbranch_scc1 out_loop")

    b = tail
    gate = []
    for i in range(0, 20, 4):
        gate += interleave(*[silu(f"v{BV+i+j}", f"v{BV+i+j}", f"v{T+6+j}") + bf16_round(f"v{BV+i+j}", f"v{BV+i+j}")
                             for j in range(4)])
    vec = [Fill(x) for x in gate]
    for g in range(4):
        vec, non = group(b, g, g == 0, vec=vec)
        assert not non
    assert not vec
    for q in range(1, 4):
        for mb in range(5):
            b(f"ds_write_b128 v{VW+q-1}, {v(acc(mb,q),4)} offset:{1024*mb}")
    b("s_waitcnt lgkmcnt(0)\ns_barrier")
    P = BUF3
    for mb in range(5):
        for i in range(3):
            b(f"ds_read_b128 {v(P+4*(3*mb+i),4)}, v{VR} offset:{5120*i+1024*mb}")
    for mb in range(5):
        y = acc(mb, 0)
        p = P + 12 * mb
        for j in range(4):
            b(f"v_add_f32 v{p+j}, v{p+j}, v{p+4+j}\nv_add_f32 v{y+j}, v{y+j}, v{p+8+j}")
        for j in range(4):
            b(f"v_add_f32 v{y+j}, v{y+j}, v{p+j}")
        for j in range(2):
            b(f"v_cvt_pk_bf16_f32 v{p+j}, v{y+2*j}, v{y+2*j+1}")
        for j in range(2):
            b(f"v_lshlrev_b32 v{y+2*j}, 16, v{p+j}\nv_and_b32 v{y+2*j+1}, s33, v{p+j}")
        for j in range(4):
            b(f"v_mul_f32 v{y+j}, v{y+j}, v{BV+4*mb+j}")
        for j in range(2):
            b(f"v_cvt_pk_bf16_f32 v{p+j}, v{y+2*j}, v{y+2*j+1}")
        for j in range(2):
            b(f"v_lshlrev_b32 v{y+2*j}, 16, v{p+j}\nv_and_b32 v{y+2*j+1}, s33, v{p+j}")
            b(f"v_lshlrev_b32 v{p+4+2*j}, 16, v{XR+2*mb+j}\nv_and_b32 v{p+5+2*j}, s33, v{XR+2*mb+j}")
        for j in range(4):
            b(f"v_add_f32 v{y+j}, v{y+j}, v{p+4+j}")
        for j in range(2):
            b(f"v_cvt_pk_bf16_f32 v{p+j}, v{y+2*j}, v{y+2*j+1}")
        b(f"buffer_store_dwordx2 {v(p,2)}, v{VO}, s[16:19], 0 offen offset:{32*mb}")
    end("out_end:\ns_endpgm")
    blocks = [head, slow, pre, loop, tail, end]
    paths = [[head, pre, loop, loop, tail, end], [head, slow, pre, loop, loop, tail, end]]
    text = finalize(blocks, paths)
    return dict(name=NAME, text=entry(NAME) + "\n" + text, desc=descriptor(NAME, 512, 64, 256),
                grid=256, block=256, lds=61440)
```

```python
from common import *

NAME = "prep_kernel"


def build():
    head, ln, wof, end = Block("head"), Block("ln"), Block("wof"), Block("end")
    b = head
    b("s_cmp_ge_u32 s2, 256\ns_cbranch_scc1 prep_end")
    b(f"s_load_dwordx2 s[4:5], s[0:1], {KA_X}\ns_load_dwordx2 s[6:7], s[0:1], {KA_WO}")
    b(f"s_load_dwordx2 s[8:9], s[0:1], {KA_WR}\ns_load_dwordx2 s[10:11], s[0:1], {KA_WS}")
    b("v_lshrrev_b32 v1, 6, v0\nv_and_b32 v0, 63, v0")
    b("v_readfirstlane_b32 s3, v1")
    b("s_waitcnt lgkmcnt(0)")
    srd(b, 12, 4, X_BYTES)
    srd(b, 16, 6, W_BYTES)
    srd(b, 20, 8, 1280)
    srd(b, 24, 10, WS_OF)
    b("s_cmp_ge_u32 s3, 2\ns_cbranch_scc1 prep_wof")

    b = ln
    XP, WP, XF = 8, 28, 48
    b("s_lshl_b32 s28, s2, 3\ns_lshl_b32 s29, s3, 2\ns_add_u32 s28, s28, s29")
    b("s_mul_i32 s29, s28, 1280")
    b("v_lshrrev_b32 v1, 4, v0\nv_and_b32 v2, 15, v0")
    b("v_lshlrev_b32 v3, 4, v2\nv_mul_u32_u24 v4, 0x500, v1\nv_add_u32 v4, v4, v3")
    for i in range(5):
        b(f"buffer_load_dwordx4 {v(XP+4*i,4)}, v4, s[12:15], s29 offen offset:{256*i}")
    for i in range(5):
        b(f"buffer_load_dwordx4 {v(WP+4*i,4)}, v3, s[20:23], 0 offen offset:{256*i}")
    b("s_lshr_b32 s30, s28, 6\ns_mul_i32 s30, s30, 81920")
    b("s_bfe_u32 s31, s28, 0x20004\ns_lshl_b32 s31, s31, 10\ns_add_u32 s30, s30, s31")
    b("s_and_b32 s31, s28, 15\ns_lshl_b32 s31, s31, 4\ns_add_u32 s30, s30, s31")
    b("v_lshrrev_b32 v5, 2, v2\nv_lshlrev_b32 v5, 12, v5\nv_and_b32 v6, 3, v2")
    b("v_lshl_add_u32 v5, v6, 8, v5\nv_lshl_add_u32 v5, v1, 4, v5")
    b("s_mov_b32 s33, 0xffff0000")
    for i in range(20):
        b(f"v_lshlrev_b32 v{XF+2*i}, 16, v{XP+i}\nv_and_b32 v{XF+2*i+1}, s33, v{XP+i}")
    A0, A1, M = 88, 90, 92
    b(f"v_pk_add_f32 {v(A0,2)}, {v(XF,2)}, {v(XF+2,2)}\nv_pk_add_f32 {v(A1,2)}, {v(XF+4,2)}, {v(XF+6,2)}")
    for i in range(4, 20):
        acc = A0 if i % 2 == 0 else A1
        b(f"v_pk_add_f32 {v(acc,2)}, {v(acc,2)}, {v(XF+2*i,2)}")
    b(f"v_pk_add_f32 {v(A0,2)}, {v(A0,2)}, {v(A1,2)}\nv_add_f32 v{M}, v{A0}, v{A0+1}")
    b.extend(row_reduce("v_add_f32", f"v{M}"))
    b(f"v_mul_f32 v{M}, {fbits(1/640)}, v{M}")
    D = 94
    for i in range(20):
        acc = A0 if i % 2 == 0 else A1
        d = D + 2 * (i % 2)
        b(f"v_pk_add_f32 {v(d,2)}, {v(XF+2*i,2)}, {v(M,2)} op_sel_hi:[1,0] neg_lo:[0,1] neg_hi:[0,1]")
        if i < 2:
            b(f"v_pk_mul_f32 {v(acc,2)}, {v(d,2)}, {v(d,2)}")
        else:
            b(f"v_pk_fma_f32 {v(acc,2)}, {v(d,2)}, {v(d,2)}, {v(acc,2)}")
    VAR, RS = 98, 100
    b(f"v_pk_add_f32 {v(A0,2)}, {v(A0,2)}, {v(A1,2)}\nv_add_f32 v{VAR}, v{A0}, v{A0+1}")
    b.extend(row_reduce("v_add_f32", f"v{VAR}"))
    b(f"v_mul_f32 v{VAR}, {fbits(1/640)}, v{VAR}")
    b.extend(bf16_round(f"v{M}", f"v{M}"))
    b.extend(bf16_round(f"v{VAR}", f"v{VAR}"))
    b(f"v_add_f32 v{VAR}, {fbits(1e-5)}, v{VAR}")
    b.extend(bf16_round(f"v{VAR}", f"v{VAR}"))
    b(f"v_sqrt_f32 v{VAR}, v{VAR}")
    b.extend(bf16_round(f"v{VAR}", f"v{VAR}"))
    b(f"v_rcp_f32 v{RS}, v{VAR}")
    R0 = 102
    b(f"v_mov_b32 v{R0}, 0\nv_mov_b32 v{R0+1}, 0")
    for i in range(20):
        x = XF + 2 * i
        b(f"v_pk_add_f32 {v(x,2)}, {v(x,2)}, {v(M,2)} op_sel_hi:[1,0] neg_lo:[0,1] neg_hi:[0,1]")
    for i in range(20):
        x = XF + 2 * i
        b(f"v_cvt_pk_bf16_f32 v{XP+i}, v{x}, v{x+1}")
    for i in range(20):
        x = XF + 2 * i
        b(f"v_lshlrev_b32 v{x}, 16, v{XP+i}\nv_and_b32 v{x+1}, s33, v{XP+i}")
    for i in range(20):
        x = XF + 2 * i
        b(f"v_pk_mul_f32 {v(x,2)}, {v(x,2)}, {v(RS,2)} op_sel_hi:[1,0]")
    for i in range(20):
        x = XF + 2 * i
        b(f"v_cvt_pk_bf16_f32 v{XP+i}, v{x}, v{x+1}")
        if i % 4 == 3:
            k = i // 4
            b(f"buffer_store_dwordx4 {v(XP+4*k,4)}, v5, s[24:27], s30 offen")
            b("s_add_u32 s30, s30, 16384")
    for i in range(20):
        b(f"v_dot2_f32_bf16 v{R0+i%2}, v{XP+i}, v{WP+i}, v{R0+i%2}")
    b("s_nop 2")
    b(f"v_add_f32 v{R0}, v{R0}, v{R0+1}")
    b.extend(row_reduce("v_add_f32", f"v{R0}"))
    b(f"v_cvt_pk_bf16_f32 v{R0}, v{R0}, v{R0}\nv_lshlrev_b32 v{R0}, 16, v{R0}")
    b(f"v_ashrrev_i32 v{R0+1}, 31, v{R0}\nv_or_b32 v{R0+1}, 0x80000000, v{R0+1}")
    b(f"v_xor_b32 v{R0}, v{R0}, v{R0+1}\nv_and_b32 v{R0}, s33, v{R0}")
    b(f"v_add_u32 v6, s28, v1\nv_sub_u32 v7, 0xffff, v6\nv_or_b32 v{R0}, v{R0}, v7")
    b(f"v_lshlrev_b32 v6, 2, v6\ns_mov_b32 s31, {WS_RK}")
    b("v_cmp_eq_u32 vcc, 0, v2\ns_and_saveexec_b64 s[34:35], vcc")
    b(f"buffer_store_dword v{R0}, v6, s[24:27], s31 offen")
    b("s_endpgm")

    b = wof
    b("prep_wof:")
    b("s_lshr_b32 s28, s2, 1\ns_and_b32 s29, s2, 1\ns_sub_u32 s3, s3, 2")
    b("s_lshl_b32 s29, s29, 1\ns_add_u32 s29, s29, s3")
    b("s_mul_i32 s30, s28, 40960\ns_mul_i32 s31, s29, 320\ns_add_u32 s30, s30, s31")
    b("s_mul_i32 s32, s3, 10240")
    b("v_lshrrev_b32 v1, 1, v0\nv_mul_u32_u24 v1, 0x500, v1\nv_and_b32 v2, 1, v0\nv_lshl_add_u32 v1, v2, 4, v1")
    for i in range(10):
        b(f"s_add_u32 m0, s32, {i*(1024-32)}")
        b(f"buffer_load_dwordx4 v1, s[16:19], s30 offen offset:{32*i} lds", tag=f"d{i}")
    b("v_bfe_u32 v2, v0, 2, 4\nv_lshlrev_b32 v2, 5, v2\nv_and_b32 v3, 3, v0")
    b("v_lshl_add_u32 v2, v3, 3, v2\nv_add_u32 v2, s32, v2\nv_lshlrev_b32 v3, 4, v0")
    b(f"s_mul_i32 s30, s29, {2*655360}\ns_mul_i32 s31, s28, 5120\ns_add_u32 s30, s30, s31\ns_add_u32 s30, s30, {WS_WOF}")
    for i in range(10):
        b(Wait(tags=f"d{i}"))
        for h in range(2):
            b(f"ds_read_b64_tr_b16 {v(8+4*i+2*h,2)}, v2 offset:{1024*i+512*h}")
    for i in range(10):
        b(f"buffer_store_dwordx4 {v(8+4*i,4)}, v3, s[24:27], s30 offen")
        b(f"s_add_u32 s30, s30, {1024 if i != 4 else 655360 - 4096}")
    end("prep_end:\ns_endpgm")
    text = finalize([head, ln, wof, end], [[head, ln], [head, wof, end]])
    return dict(name=NAME, text=entry(NAME) + "\n" + text, desc=descriptor(NAME, 104, 48, 104),
                grid=256, block=256, lds=20480)
```

```python
import os
import sys
sys.path.insert(0, os.path.dirname(os.path.abspath(__file__)))
import k_prep, k_moe, k_attn, k_out

ROOT = os.path.dirname(os.path.dirname(os.path.abspath(__file__)))
STEM = "recurrent_scan__mha_block_cached__moe_arch_mod__prompt"


def render(kernels):
    ref = open(os.path.join(ROOT, STEM + ".s.ref")).read().split("\n")
    head = [l for l in ref if l.startswith("; Kernarg") or l.startswith(";   offset")]
    out = head + [f"; @launch kernel={k['name']} grid=({k['grid']},1,1) block=({k['block']},1,1) lds={k['lds']}" for k in kernels]
    out += ['.amdgcn_target "amdgcn-amd-amdhsa--gfx950"', ".text"]
    seen = []
    for k in kernels:
        if k["name"] not in seen:
            seen.append(k["name"])
            out.append(k["text"])
    out.append('.section .rodata,"a"')
    done = []
    for k in kernels:
        if k["name"] not in done:
            done.append(k["name"])
            out += [".p2align 6", k["desc"]]
    return "\n".join(out) + "\n"


if __name__ == "__main__":
    ks = [k_prep.build(), k_moe.build_ffn1(), k_moe.build_ffn2(), k_attn.build(), k_out.build()]
    path = sys.argv[1] if len(sys.argv) > 1 else os.path.join(ROOT, STEM + ".s")
    open(path, "w").write(render(ks))
    print("wrote", path)
```

```python
import re

TRANS = ("v_exp_f32", "v_log_f32", "v_rcp_f32", "v_rsq_f32", "v_sqrt_f32", "v_sin_f32", "v_cos_f32")
RMW_DST = ("v_fmac_f32", "v_dot2c_f32_bf16", "v_writelane_b32", "s_addk_i32", "s_mulk_i32", "v_pk_fmac_f16")
_REG = re.compile(r"^(-?)(?:abs\()?\|?([vas])(?:(\d+)|\[(\d+):(\d+)\])\|?\)?$")


def r(cls, start, n=1):
    return f"{cls}{start}" if n == 1 else f"{cls}[{start}:{start + n - 1}]"


def v(start, n=1):
    return r("v", start, n)


def a(start, n=1):
    return r("a", start, n)


def s(start, n=1):
    return r("s", start, n)


def regs_of(tok):
    tok = tok.strip()
    if tok in ("vcc", "exec"):
        return [tok]
    if tok in ("vcc_lo", "vcc_hi"):
        return ["vcc"]
    if tok in ("exec_lo", "exec_hi"):
        return ["exec"]
    if tok == "m0":
        return ["m0"]
    m = _REG.match(tok)
    if not m:
        return []
    cls = m.group(2)
    if m.group(3) is not None:
        return [(cls, int(m.group(3)))]
    return [(cls, i) for i in range(int(m.group(4)), int(m.group(5)) + 1)]


class Ins:
    def __init__(self, text, tag=None):
        self.text = text.strip()
        self.tag = tag
        self.passes = 0
        self.srcc = []
        self.srcab = []
        self._parse()

    def __repr__(self):
        return self.text

    def _parse(self):
        t = self.text
        self.rd, self.wr = [], []
        if t.endswith(":"):
            self.kind, self.op = "label", t
            return
        if t.startswith(".") or t.startswith(";"):
            self.kind, self.op = "dir", t
            return
        parts = t.split(None, 1)
        op = self.op = parts[0]
        rest = parts[1] if len(parts) > 1 else ""
        toks = [x.strip() for x in re.split(r",(?![^\[\(]*[\]\)])", rest)] if rest else []
        mods = []
        if toks:
            last = toks[-1].split()
            toks[-1] = last[0] if last else ""
            mods = last[1:]
        self.mods = mods
        R = [regs_of(x) for x in toks]
        flat = lambda L: [x for y in L for x in y]
        base = re.sub(r"_(e32|e64|dpp|sdwa)$", "", op)
        if op.startswith("v_mfma"):
            self.kind = "mfma"
            self.passes = 8 if "32x32" in op else 4
            self.wr = R[0]
            self.srcab = R[1] + R[2]
            self.srcc = R[3]
            self.rd = self.srcab + self.srcc
        elif op.startswith("v_"):
            self.kind = "valu"
            if base in TRANS:
                self.kind = "trans"
            dpp = op.endswith("_dpp") or any(m.startswith(("row_", "quad_perm", "wave_")) for m in mods)
            self.dpp = dpp
            if base.startswith("v_cmpx"):
                self.wr, self.rd = R[0] + ["exec"], flat(R[1:])
            elif base.startswith("v_permlane") and "swap" in base:
                self.wr = self.rd = R[0] + R[1]
            elif base in ("v_add_co_u32", "v_sub_co_u32", "v_addc_co_u32", "v_subb_co_u32", "v_mad_u64_u32"):
                self.wr, self.rd = R[0] + R[1], flat(R[2:])
            elif base == "v_nop":
                pass
            else:
                self.wr, self.rd = R[0], flat(R[1:])
                if base in RMW_DST or dpp or "op_sel" in t and "v_pk_" not in t or op.endswith("_sdwa"):
                    self.rd = self.rd + R[0]
        elif op.startswith("ds_"):
            if op.startswith(("ds_read", "ds_bpermute", "ds_permute", "ds_swizzle")) or "_rtn" in op:
                self.kind, self.wr, self.rd = "ds_rd", R[0], flat(R[1:])
            else:
                self.kind, self.rd = "ds_wr", flat(R)
        elif op.startswith(("buffer_", "global_")):
            if op in ("buffer_wbl2", "buffer_inv"):
                self.kind = "vm_misc"
            elif "lds" in mods or "_lds_" in op:
                self.kind, self.rd = "dma", flat(R) + ["m0"]
            elif "_load" in op:
                self.kind, self.wr, self.rd = "vm_ld", R[0], flat(R[1:])
            elif "_atomic" in op:
                self.kind, self.rd = "vm_st", flat(R)
                if "sc0" in mods:
                    self.kind = "vm_ld"
                    self.wr = R[0]
            else:
                self.kind, self.rd = "vm_st", flat(R)
                self.wide = op.endswith(("x3", "x4"))
                self.data = R[0] if op.startswith("buffer_") else R[1]
        elif op.startswith(("s_load", "s_buffer_load", "s_memtime", "s_memrealtime")):
            self.kind, self.wr, self.rd = "smem", R[0], flat(R[1:])
        elif op == "s_waitcnt":
            self.kind = "wait"
            m = re.search(r"vmcnt\((\d+)\)", t)
            self.vm = int(m.group(1)) if m else None
            m = re.search(r"lgkmcnt\((\d+)\)", t)
            self.lg = int(m.group(1)) if m else None
        elif op == "s_nop":
            self.kind = "nop"
            self.n = int(toks[0], 0) + 1
        elif op == "s_barrier":
            self.kind = "barrier"
        elif op.startswith(("s_branch", "s_cbranch", "s_endpgm", "s_setprio", "s_sleep")):
            self.kind = "ctl"
            if "vcc" in op:
                self.rd = ["vcc"]
            if "exec" in op:
                self.rd = ["exec"]
            if "scc" in op:
                self.rd = ["scc"]
        elif op.startswith("s_cmp") or op.startswith("s_bitcmp"):
            self.kind, self.wr, self.rd = "salu", ["scc"], flat(R)
        elif op.startswith("s_"):
            self.kind, self.wr, self.rd = "salu", R[0] + ["scc"], flat(R[1:])
            if "saveexec" in op:
                self.wr, self.rd = self.wr + ["exec"], self.rd + ["exec"]
            if base in RMW_DST:
                self.rd = self.rd + R[0]
            if op.startswith(("s_mov", "s_getpc", "s_mul_i32", "s_mul_hi", "s_getreg")):
                self.wr = R[0]
            if op.startswith(("s_addc", "s_subb", "s_cselect")):
                self.rd = self.rd + ["scc"]
        else:
            raise ValueError("unknown instruction: " + t)

    @property
    def is_vec(self):
        return self.kind in ("valu", "trans")

    @property
    def cost(self):
        if self.kind == "trans" or self.kind in ("dma", "vm_ld", "vm_st"):
            return 8
        if self.kind in ("valu", "ds_rd", "ds_wr"):
            return 4
        return 0


class Wait(Ins):
    def __init__(self, regs=(), tags=(), ds_all=False):
        self.text = "s_waitcnt ?"
        self.kind = "pwait"
        self.op = "pwait"
        self.rd, self.wr = [], []
        self.tag = None
        self.regs = set()
        for x in ([regs] if isinstance(regs, str) else regs):
            self.regs.update(regs_of(x))
        self.tags = set([tags] if isinstance(tags, str) else tags)
        self.ds_all = ds_all
        self.vm = None
        self.lg = None


class Block:
    def __init__(self, name):
        self.name = name
        self.ins = []

    def __call__(self, text, tag=None):
        if isinstance(text, Ins):
            self.ins.append(text)
            return text
        out = None
        for line in text.split("\n"):
            if line.strip():
                out = Ins(line, tag)
                self.ins.append(out)
        return out

    def extend(self, items):
        for x in items:
            self(x)


VM_KINDS = ("dma", "vm_ld", "vm_st")
DS_KINDS = ("ds_rd", "ds_wr")


def _merge(old, new):
    if new is None:
        return old
    return new if old is None else min(old, new)


def resolve_waits(paths, auto=True):
    for _ in range(50):
        changed = False
        for path in paths:
            vmq, dsq, smem = [], [], set()
            for blk in path:
                i = 0
                while i < len(blk.ins):
                    ins = blk.ins[i]
                    if ins.kind == "pwait":
                        nv = _need(vmq, ins.regs, ins.tags)
                        nl = 0 if ins.ds_all and dsq else _need(dsq, ins.regs, ins.tags)
                        if smem & ins.regs or (nl is not None and smem):
                            nl = 0
                        nv = None if nv is None else min(nv, 63)
                        nl = None if nl is None else min(nl, 15)
                        mv, ml = _merge(ins.vm, nv), _merge(ins.lg, nl)
                        if (mv, ml) != (ins.vm, ins.lg):
                            ins.vm, ins.lg = mv, ml
                            changed = True
                    if ins.kind in ("wait", "pwait"):
                        if ins.vm is not None:
                            del vmq[: max(0, len(vmq) - ins.vm)]
                        if ins.lg is not None:
                            del dsq[: max(0, len(dsq) - ins.lg)]
                            if ins.lg == 0:
                                smem = set()
                    else:
                        touched = set(ins.rd) | set(ins.wr)
                        pend = [x for q in (vmq, dsq) for o in q for x in o.wr if x in touched]
                        pend += [x for x in smem if x in touched]
                        if pend:
                            if not auto:
                                raise RuntimeError(f"uncovered load result {pend[:4]} at {blk.name}[{i}] {ins.text}")
                            w = Wait()
                            w.regs = set(pend)
                            w.auto = True
                            blk.ins.insert(i, w)
                            changed = True
                            continue
                        if ins.kind in VM_KINDS:
                            vmq.append(ins)
                        elif ins.kind in DS_KINDS:
                            dsq.append(ins)
                        elif ins.kind == "smem":
                            smem.update(ins.wr)
                    i += 1
        if not changed:
            break
    else:
        raise RuntimeError("wait resolution did not converge")


def _need(queue, regs, tags):
    last = -1
    for k, o in enumerate(queue):
        if (o.tag is not None and o.tag in tags) or any(x in regs for x in o.wr):
            last = k
    return None if last < 0 else len(queue) - 1 - last


def _states(ins):
    if ins.kind in ("label", "dir"):
        return 0
    if ins.kind == "pwait":
        return 1 if (ins.vm is not None or ins.lg is not None) else 0
    return ins.n if ins.kind == "nop" else 1


XDL_VALU = {4: 8, 8: 12}
XDL_OVERLAP_C = {4: 6, 8: 10}
XDL_WAR_C = {4: 3, 8: 7}


def required_gap(p, c):
    need = 0
    pw, prd = set(p.wr), set(p.rd)
    cr, cw = set(c.rd), set(c.wr)
    vec_c = c.kind in ("valu", "trans")
    mem_c = c.kind in VM_KINDS or c.kind in DS_KINDS
    if p.kind == "mfma":
        if c.kind == "mfma":
            if pw & set(c.srcab):
                need = max(need, XDL_VALU[p.passes])
            if pw & set(c.srcc) and (c.srcc != p.wr or c.passes != p.passes):
                need = max(need, XDL_OVERLAP_C[p.passes])
            if pw & cw and c.srcc != p.wr:
                need = max(need, XDL_OVERLAP_C[p.passes])
        elif (vec_c or mem_c) and pw & (cr | cw):
            need = max(need, XDL_VALU[p.passes])
        if (vec_c or c.kind in ("ds_rd", "vm_ld")) and set(p.srcc) & cw:
            need = max(need, XDL_WAR_C[p.passes])
    if p.kind in ("valu", "trans"):
        vw = {x for x in pw if isinstance(x, tuple) and x[0] in "va"}
        sw = {x for x in pw if x == "vcc" or (isinstance(x, tuple) and x[0] == "s")}
        if c.kind == "mfma" and vw & cr:
            need = max(need, 2)
        if c.kind == "mfma" and "exec" in pw:
            need = max(need, 4)
        if vec_c:
            if p.kind == "trans" and vw & cr and c.kind != "trans":
                need = max(need, 1)
            if p.kind == "trans" and vw & cr and c.kind == "trans":
                need = max(need, 1)
            if (c.op.startswith("v_permlane") or getattr(c, "dpp", False)) and vw & cr:
                need = max(need, 2)
            if c.op.startswith(("v_readlane", "v_readfirstlane")) and vw & cr:
                need = max(need, 1)
            if sw & cr:
                need = max(need, 4 if c.op.startswith(("v_readlane", "v_writelane", "v_div_fmas")) else 2)
            if "exec" in pw:
                if getattr(c, "dpp", False):
                    need = max(need, 5)
                elif c.op.startswith(("v_readlane", "v_readfirstlane", "v_writelane", "v_permlane")):
                    need = max(need, 4)
            if ("op_sel" in p.text and "v_pk_" not in p.text or p.op.endswith("_sdwa")) and vw & (cr | cw):
                need = max(need, 1)
        if c.kind in VM_KINDS and sw & cr:
            need = max(need, 5)
        if c.kind in ("salu", "ctl", "smem") and sw & cr:
            need = max(need, 1)
    if p.kind == "salu" and "m0" in pw and (c.kind == "dma" or "m0" in cr):
        need = max(need, 1)
    if p.kind == "salu" and "exec" in pw and vec_c and getattr(c, "dpp", False):
        need = max(need, 1)
    if p.kind == "vm_st" and getattr(p, "wide", False) and set(p.data) & cw:
        need = max(need, 2)
    return need


def pad_hazards(paths, auto=True):
    added = 0
    for _ in range(200):
        fix = None
        for path in paths:
            window = []
            for blk in path:
                for i, ins in enumerate(blk.ins):
                    if ins.kind not in ("label", "dir", "pwait", "wait", "nop", "barrier"):
                        dist = 0
                        for p in reversed(window):
                            need = required_gap(p, ins)
                            if need > dist:
                                fix = (blk, i, need - dist, p, ins)
                                break
                            dist += _states(p)
                            if dist >= 12:
                                break
                        if fix:
                            break
                    window.append(ins)
                    if len(window) > 40:
                        del window[0]
                if fix:
                    break
            if fix:
                break
        if not fix:
            return added
        blk, i, n, p, ins = fix
        if not auto:
            raise RuntimeError(f"hazard in {blk.name}[{i}]: {p.text} -> {ins.text} short by {n}")
        blk.ins.insert(i, Ins(f"s_nop {n - 1}"))
        blk.ins[i].why = f"{p.op}->{ins.op}"
        added += 1
    raise RuntimeError("hazard padding did not converge")


def _pad_many(paths):
    total = 0
    while True:
        try:
            return total + pad_hazards(paths)
        except RuntimeError as e:
            if "converge" not in str(e):
                raise
            total += 200


def finalize(blocks, paths):
    resolve_waits(paths)
    _pad_many(paths)
    resolve_waits(paths, auto=False)
    for path in paths:
        check_m0(path)
    out = []
    for blk in blocks:
        for ins in blk.ins:
            if ins.kind == "pwait":
                parts = []
                if ins.vm is not None:
                    parts.append(f"vmcnt({ins.vm})")
                if ins.lg is not None:
                    parts.append(f"lgkmcnt({ins.lg})")
                if parts:
                    out.append("  s_waitcnt " + " ".join(parts))
            elif ins.kind == "label":
                out.append(ins.text)
            else:
                out.append("  " + ins.text)
    return "\n".join(out)


class Fill:
    def __init__(self, ins, lo=0, hi=None, tag=None):
        self.ins = ins if isinstance(ins, Ins) else Ins(ins, tag)
        self.lo, self.hi = lo, hi


def _gap_ok(history, ins):
    dist = 0
    for p in reversed(history):
        if required_gap(p, ins) > dist:
            return False
        dist += 1 if p.kind == "pwait" else _states(p)
        if dist >= 12:
            break
    return True


def weave(blk, spine, vec, non, budget=8, flush=True, exact=False, extra=None):
    vec, non = list(vec), list(non)
    extra = extra if extra is not None else []
    for k, m in enumerate(spine):
        for q in (non, vec, extra):
            last = max((j for j, f in enumerate(q) if f.hi is not None and f.hi <= k), default=-1)
            for f in q[: last + 1]:
                blk(f.ins)
            del q[: last + 1]
        blk(m)
        left = budget
        take = ([], [])
        for q, out in zip((non, vec), take):
            while q and q[0].lo <= k and q[0].ins.cost <= left:
                left -= q[0].ins.cost
                out.append(q.pop(0).ins)
            if exact and q and q[0].lo <= k:
                raise RuntimeError(f"slot {k} over budget at {q[0].ins.text}")
        blk.extend(take[0])
        while extra and extra[0].lo <= k and not extra[0].ins.is_vec and extra[0].ins.kind != "mfma":
            x = extra[0].ins
            if min(x.cost, 4) > left or not _gap_ok(blk.ins[-30:], x):
                break
            left -= min(x.cost, left)
            blk(extra.pop(0).ins)
        blk.extend(take[1])
        while extra and extra[0].lo <= k and extra[0].ins.is_vec:
            x = extra[0].ins
            if min(x.cost, 4) > left or not _gap_ok(blk.ins[-30:], x):
                break
            left -= min(x.cost, left)
            blk(extra.pop(0).ins)
        while extra and extra[0].lo <= k and extra[0].ins.kind == "mfma" and _gap_ok(blk.ins[-30:], extra[0].ins):
            blk(extra.pop(0).ins)
    if flush:
        for f in non + vec:
            blk(f.ins)
        return [], []
    return vec, non


def check_m0(path):
    cur = None
    for blk in path:
        for ins in blk.ins:
            if "m0" in ins.wr:
                cur = ins
            if ins.kind == "dma" and getattr(ins, "m0", cur) is not cur:
                raise RuntimeError(f"M0 clobbered before {ins.text} in {blk.name}")


def lds_dma(m0_text, loads, tag):
    m = Ins(m0_text)
    out = [m]
    for x in loads:
        i = Ins(x, tag)
        i.m0 = m
        out.append(i)
    return out


def descriptor(name, vgpr, sgpr, accum):
    return f""".amdhsa_kernel {name}
  .amdhsa_next_free_vgpr {vgpr}
  .amdhsa_next_free_sgpr {sgpr}
  .amdhsa_accum_offset {accum}
  .amdhsa_group_segment_fixed_size 0
  .amdhsa_kernarg_size 104
  .amdhsa_user_sgpr_count 2
  .amdhsa_user_sgpr_kernarg_segment_ptr 1
  .amdhsa_system_sgpr_workgroup_id_x 1
.end_amdhsa_kernel"""


def entry(name):
    return f".globl {name}\n.p2align 8\n.type {name},@function\n{name}:"
```

```python
from asmlib import *

KA_X, KA_K, KA_V, KA_WQ, KA_WO = 0, 8, 16, 24, 32
KA_WR, KA_WG, KA_WU, KA_WD, KA_OUT, KA_DBG, KA_WS = 48, 56, 64, 72, 80, 88, 96

WS_XF = 0x0
WS_RK = 0x280000
WS_TOP = 0x282000
WS_H = 0x283000
WS_YP = 0x290000
WS_WOF = 0x300000
WS_OF = 0x800000
WS_END = 0x1800000

X_BYTES = 2048 * 640 * 2
KV_HEAD_BYTES = 2048 * 128 * 2
W_BYTES = 640 * 4096 * 2
WF_BYTES = 640 * 1728 * 2

LOG2E = 1.4426950408889634

OPT = {}


def opt(name, default=None):
    import common
    return common.OPT.get(name, default)


def fbits(x):
    import struct
    return "0x%08x" % struct.unpack("<I", struct.pack("<f", x))[0]


def srd(b, d, ptr, size, off=None):
    if off is None:
        b(f"s_mov_b32 s{d}, s{ptr}\ns_mov_b32 s{d+1}, s{ptr+1}")
    else:
        b(f"s_add_u32 s{d}, s{ptr}, {off}\ns_addc_u32 s{d+1}, s{ptr+1}, 0")
    b(f"s_mov_b32 s{d+2}, {size}\ns_mov_b32 s{d+3}, 0x20000")


def bf16_round(dst, src):
    return [f"v_cvt_pk_bf16_f32 {dst}, {src}, {src}", f"v_lshlrev_b32 {dst}, 16, {dst}"]


def row_reduce(op, reg):
    return [f"{op}_dpp {reg}, {reg}, {reg} row_ror:{n} row_mask:0xf bank_mask:0xf" for n in (8, 4, 2, 1)]


def cross_rows(op, reg, tmp):
    return [f"v_mov_b32 {tmp}, {reg}", f"v_permlane16_swap_b32 {reg}, {tmp}", f"{op} {reg}, {reg}, {tmp}",
            f"v_mov_b32 {tmp}, {reg}", f"v_permlane32_swap_b32 {reg}, {tmp}", f"{op} {reg}, {reg}, {tmp}"]


def interleave(*lists):
    out = []
    n = max(len(x) for x in lists)
    for i in range(n):
        for x in lists:
            if i < len(x):
                out.append(x[i])
    return out


def top8(keys, nkeys, tmp, s_prev, s_t, s_out, rows=4):
    L = [f"s_mov_b32 s{s_prev}, -1"]
    for e in range(8):
        acc = tmp
        if nkeys == 1:
            L.append(f"v_sub_u32 v{acc}, s{s_prev}, v{keys}")
        for i in range(0, nkeys - 1, 2):
            t0, t1 = tmp + 1 + (i % 4), tmp + 2 + (i % 4)
            L.append(f"v_sub_u32 v{t0}, s{s_prev}, v{keys+i}")
            L.append(f"v_sub_u32 v{t1}, s{s_prev}, v{keys+i+1}")
            L.append(f"v_min_u32 v{acc}, v{t0}, v{t1}" if i == 0 else f"v_min3_u32 v{acc}, v{acc}, v{t0}, v{t1}")
        L += row_reduce("v_min_u32", f"v{acc}")
        for k in range(rows):
            L.append(f"v_readlane_b32 s{s_t+k}, v{acc}, {16*k}")
        L.append(f"s_min_u32 s{s_t}, s{s_t}, s{s_t+1}")
        if rows == 4:
            L.append(f"s_min_u32 s{s_t+2}, s{s_t+2}, s{s_t+3}")
            L.append(f"s_min_u32 s{s_t}, s{s_t}, s{s_t+2}")
        L.append(f"s_sub_u32 s{s_out+e}, s{s_prev}, s{s_t}")
        L.append(f"s_sub_u32 s{s_prev}, s{s_out+e}, 1")
    return L


def silu(dst, src, t):
    return [f"v_mul_f32 {t}, {fbits(-LOG2E)}, {src}", f"v_exp_f32 {t}, {t}", f"v_add_f32 {t}, 1.0, {t}",
            f"v_rcp_f32 {t}, {t}", f"v_mul_f32 {dst}, {src}, {t}"]


def touch(b, text):
    ins = b(text, tag="touch")
    ins.wr = []
    return ins


def code_prefetch(b, s_pc, vtmp, vjunk, label, end_label, rounds):
    b(f"s_getpc_b64 s[{s_pc}:{s_pc+1}]")
    b(f"{label}_pc:")
    b(f"s_add_u32 s{s_pc}, s{s_pc}, {label}-{label}_pc\ns_addc_u32 s{s_pc+1}, s{s_pc+1}, 0")
    b(f"v_lshlrev_b32 v{vtmp}, 7, v0")
    for k in range(rounds):
        if k:
            b(f"v_add_u32 v{vtmp}, 0x8000, v{vtmp}")
        b(f"v_min_u32 v{vtmp}, {end_label}-{label}-4, v{vtmp}")
        touch(b, f"global_load_dword v{vjunk}, v{vtmp}, s[{s_pc}:{s_pc+1}]")


WS_STAMP = 0x2000000
STAMPS = False


def stamp(b, i, real=False):
    if _stamps_on():
        b(f"{'s_memrealtime' if real else 's_memtime'} s[{64+2*i}:{65+2*i}]")


def stamp_flush(b, n, kernel_slot, s_ws, s_wave, vtmp):
    if not _stamps_on():
        return
    b("s_waitcnt lgkmcnt(0)\ns_mov_b64 exec, -1")
    b(f"v_mov_b32 v{vtmp}, 0")
    for i in range(n):
        b(f"v_writelane_b32 v{vtmp}, s{64+2*i}, {i}")
    srd(b, 60, s_ws, 0x40000, WS_STAMP + kernel_slot * 0x40000)
    b(f"s_lshl_b32 s59, s2, 2\ns_add_u32 s59, s59, s{s_wave}\ns_lshl_b32 s59, s59, 6")
    b(f"v_mbcnt_lo_u32_b32 v{vtmp+1}, -1, 0\nv_mbcnt_hi_u32_b32 v{vtmp+1}, -1, v{vtmp+1}\nv_lshlrev_b32 v{vtmp+1}, 2, v{vtmp+1}")
    b("s_mov_b64 exec, 0xffff")
    b(f"buffer_store_dword v{vtmp}, v{vtmp+1}, s[60:63], s59 offen")


def _stamps_on():
    import common
    return common.STAMPS
```

```python
import common
from common import *
import k_side as side

NAME = "attn_kernel"
MF = "v_mfma_f32_16x16x32_bf16"

Q0, NEG0, L0 = 128, 192, 208
KA, VA, WA = 212, 216, 224
DK, DV, DW = 232, 236, 238
XO, OO, T = 242, 244, 245
KF, VF, LT, ONES = 128, 160, 192, 208
SRD_K, SRD_V, SRD_W, SRD_WS = 12, 16, 20, 24
S_W, S_M0, S_KV, S_X, S_WQ, S_CNT, S_O, S_C = 3, 28, 29, 30, 31, 32, 33, 34
VBASE = 65536
FLAG_LDS = side.LDS_FLAG
SCALE = LOG2E / 128 ** 0.5
SUM_LIMIT = 2.0 ** 60


def G(buf, ks2, qb):
    return buf * 64 + (ks2 * 4 + qb) * 8


def S(buf, kb, qb):
    return G(buf, kb >> 1, qb) + (kb & 1) * 4


def Qf(qb, ks):
    return Q0 + (qb * 4 + ks) * 4


def tile(db, qb):
    return (db * 4 + qb) * 4


def Xf(stage, ks2, qb):
    return a((stage % 4) * 32 + (ks2 * 4 + qb) * 4, 4)


def Kf(kb, ks):
    return a(KF + (kb & 1) * 16 + ks * 4, 4)


def Vf(db, ks2, h=None):
    base = VF + (db % 4) * 8 + ks2 * 4
    return a(base, 4) if h is None else a(base + 2 * h, 2)


def k_reads(t, kb):
    return [f"ds_read_b128 {Kf(kb, ks)}, v{KA+ks} offset:{(t % 4) * 16384 + kb * 4096}" for ks in range(4)]


def k_wait(kb):
    return Wait(regs=[Kf(kb, ks) for ks in range(4)])


def v_reads(t, db):
    return [f"ds_read_b64_tr_b16 {Vf(db, ks2, h)}, v{VA+db} offset:{(t % 4) * 16384 + ks2 * 8192 + h * 4096}"
            for ks2 in range(2) for h in range(2)]


def w_reads(s, db):
    return [f"ds_read_b64_tr_b16 {Vf(db, ks2, h)}, v{WA+db} offset:{((s + 2) % 4) * 16384 + ks2 * 8192 + h * 1024}"
            for ks2 in range(2) for h in range(2)]


def v_wait(db):
    return Wait(regs=[Vf(db, 0), Vf(db, 1)])


def dma(kind, slot, soff):
    srd_, base, voff = {"K": (SRD_K, 0, lambda j: DK + j), "V": (SRD_V, VBASE, lambda j: DV + (j & 1)),
                        "W": (SRD_W, VBASE, lambda j: DW + j)}[kind]
    tag = ("K" if kind == "K" else "V") + str(slot)
    return lds_dma(f"s_add_u32 m0, s{S_M0}, {base + slot * 16384}",
                   [f"buffer_load_dwordx4 v{voff(j)}, s[{srd_}:{srd_+3}], s{soff} offen offset:{1024*j} lds"
                    for j in range(4)], tag)


def x_loads(stage):
    return [f"buffer_load_dwordx4 {Xf(stage, ks2, qb)}, v{XO+ks2}, s[{SRD_WS}:{SRD_WS+3}], s{S_X} offen offset:{1024*qb}"
            for ks2 in range(2) for qb in range(4)] + [f"s_add_u32 s{S_X}, s{S_X}, 8192"]


def qk_spine(buf, cfun):
    L = []
    for kb in range(4):
        for qb in range(4):
            for step in range(4):
                ks = step if qb % 2 == 0 else 3 - step
                d = v(S(buf, kb, qb), 4)
                L.append(f"{MF} {d}, {Kf(kb, ks)}, {v(Qf(qb, ks), 4)}, {d if step else cfun(kb, qb)}")
    return L


def pair_spine(dst, bfun, zero):
    L = []
    for db in range(8):
        for qb in range(4):
            for step in range(2):
                ks2 = step if qb % 2 == 0 else 1 - step
                d = dst(db, qb)
                L.append(f"{MF} {d}, {Vf(db, ks2)}, {bfun(ks2, qb)}, {0 if zero and not step else d}")
    return L


def pv_spine(buf, zero=False):
    return pair_spine(lambda db, qb: a(tile(db, qb), 4), lambda ks2, qb: v(G(buf, ks2, qb), 4), zero)


def sum_spine(buf, zero=False):
    L = []
    for qb in range(4):
        d = a(LT + 4 * qb, 4)
        L += [f"{MF} {d}, {a(ONES, 4)}, {v(G(buf, ks2, qb), 4)}, {0 if zero and not ks2 else d}" for ks2 in range(2)]
    return L


def soft_tile(buf, i, sums=False):
    kb, qb = i >> 2, i & 3
    x = S(buf, kb, qb)
    p = G(buf, kb >> 1, qb) + (kb & 1) * 2
    ex = lambda k: f"v_exp_f32 v{x+k}, v{x+k}"
    ad = lambda k: f"v_add_f32 v{L0+qb}, v{L0+qb}, v{x+k}"
    cv = lambda k: f"v_cvt_pk_bf16_f32 v{p+k}, v{x+2*k}, v{x+2*k+1}"
    if sums:
        return [(0, ex(0)), (2, ex(1)), (3, ad(0)), (4, ex(2)), (5, ad(1)), (5, cv(0)), (6, ex(3)), (7, ad(2)),
                (9, ad(3)), (9, cv(1))]
    return [(0, ex(0)), (2, ex(1)), (3, cv(0)), (4, ex(2)), (6, ex(3)), (7, cv(1))]


def iteration(b, t, first=False, tail_salu=(), extra=None, wait_tags=()):
    nb, cb = (t + 1) % 2, t % 2
    spine = qk_spine(nb, lambda kb, qb: v(NEG0 + 4 * qb, 4)) + sum_spine(cb, first) + pv_spine(cb, first)
    vec = [Fill(x, lo=8 * (i + 1) + o) for i in range(16) for o, x in soft_tile(nb, i)]
    non = []
    put = lambda slot, x: non.append((slot, len(non), Fill(x, lo=slot)))
    for kb in range(3):
        for k, x in enumerate(k_reads(t + 1, kb + 1)):
            put(16 * kb + 1 + 2 * k, x)
        put(16 * kb + 14, k_wait(kb + 1))
    d = dma("V", (t + 2) % 4, S_KV) + [Ins(f"s_add_u32 s{S_KV}, s{S_KV}, 16384")] + dma("K", (t + 3) % 4, S_KV)
    if not opt("nodma"):
        for slot, x in zip((8, 9, 13, 25, 29, 30, 32, 41, 45, 49, 53), d):
            put(slot, x)
    for db in range(8):
        for k, x in enumerate(v_reads(t, db)):
            put(57 + 8 * db + 2 * k, x)
        put(70 + 8 * db, v_wait(db))
    put(120, Wait(tags=[f"K{(t + 2) % 4}", f"V{(t + 1) % 4}", *wait_tags]))
    if not opt("nobar"):
        put(122, "s_barrier")
    for slot, x in zip((123, 125, 127, 129), k_reads(t + 2, 0)):
        put(slot, x)
    for slot, x in zip((130, 132), tail_salu):
        put(slot, x)
    put(134, k_wait(0))
    left = weave(b, spine, vec, [x[2] for x in sorted(non, key=lambda z: z[:2])], flush=False, exact=True, extra=extra)
    assert left == ([], []), left


def q_final(ks, qb):
    A, B, q = tile(2 * ks, qb), tile(2 * ks + 1, qb), Qf(qb, ks)
    L = [f"v_mul_f32 v{x+j}, s{S_C}, v{x+j}" for x in (A, B) for j in range(4)]
    L += [f"v_cvt_pk_bf16_f32 v{q+j}, v{x}, v{x+1}" for j, x in enumerate((A, A + 2, B, B + 2))]
    return L, [f"v_permlane16_swap_b32 v{q}, v{q+2}", f"v_permlane16_swap_b32 v{q+1}, v{q+3}"]


def o_final(s, qb, tmp, rcp):
    src = [tile(2 * s, qb) + j for j in range(4)] + [tile(2 * s + 1, qb) + j for j in range(4)]
    L = [f"v_accvgpr_read_b32 v{tmp+j}, a{x}" for j, x in enumerate(src)]
    L += [f"v_mul_f32 v{tmp+j}, v{tmp+j}, v{rcp}" for j in range(8)]
    L += [f"v_cvt_pk_bf16_f32 v{tmp+j}, v{tmp+2*j}, v{tmp+2*j+1}" for j in range(4)]
    off = (s >> 1) * 8192 + qb * 2048 + (s & 1) * 1024
    st = f"buffer_store_dwordx4 {v(tmp,4)}, v{OO}, s[{SRD_WS}:{SRD_WS+3}], s{40 + off // 4096} offen offset:{off % 4096}"
    return L, st


def row_sums(from_tiles):
    L = [f"v_accvgpr_read_b32 v{L0+qb}, a{LT+4*qb}" for qb in range(4)] if from_tiles else []
    L += interleave(*[cross_rows("v_add_f32", f"v{L0+qb}", f"v{T+qb}") for qb in range(4)])
    L += [f"v_rcp_f32 v{NEG0+4*qb}, v{L0+qb}" for qb in range(4)]
    return L


def setup(b):
    b("s_cmp_ge_u32 s2, 256\ns_cbranch_scc1 attn_end")
    stamp(b, 0)
    stamp(b, 10, real=True)
    b(f"s_load_dwordx4 s[4:7], s[0:1], {KA_K}\ns_load_dwordx2 s[8:9], s[0:1], {KA_WQ}\ns_load_dwordx2 s[10:11], s[0:1], {KA_WS}")
    b(f"s_load_dwordx2 s[{side.P_WO}:{side.P_WO+1}], s[0:1], {KA_WO}\ns_load_dwordx2 s[{side.P_WG}:{side.P_WG+1}], s[0:1], {KA_WG}")
    b(f"s_load_dwordx4 s[{side.P_WU}:{side.P_WU+3}], s[0:1], {KA_WU}\ns_load_dwordx2 s[{side.P_DBG}:{side.P_DBG+1}], s[0:1], {KA_DBG}")
    LANE, R, C, GG = T, T + 1, T + 2, T + 3
    t0, t1 = T + 4, T + 5
    JUNK = 255
    if opt("codepf", "1") == "1":
        code_prefetch(b, 48, t0, JUNK, "attn_hot", "attn_slow", 2)
    b(f"v_lshrrev_b32 v{t0}, 6, v0\nv_and_b32 v{LANE}, 63, v0")
    b(f"v_readfirstlane_b32 s{S_W}, v{t0}")
    b("s_and_b32 s36, s2, 7\ns_lshl_b32 s36, s36, 2\ns_lshr_b32 s37, s2, 6\ns_add_u32 s36, s36, s37")
    b(f"s_bfe_u32 s37, s2, 0x30003\ns_lshl_b32 s37, s37, 2\ns_add_u32 s37, s37, s{S_W}")
    b(f"s_lshl_b32 s{S_M0}, s{S_W}, 12")
    b(f"v_lshlrev_b32 v{XO}, 4, v{LANE}\nv_add_u32 v{XO+1}, 0x1000, v{XO}")
    b(f"s_mul_i32 s{S_X}, s37, 81920")
    b(f"v_lshrrev_b32 v{GG}, 4, v{LANE}\nv_and_b32 v{C}, 15, v{LANE}")
    b(f"s_lshl_b32 s38, s{S_W}, 17\nv_lshlrev_b32 v{t0}, 13, v{GG}\nv_add_u32 v{t0}, s38, v{t0}")
    for j in range(4):
        b(f"v_or_b32 v{t1}, {(j >> 1) << 2}, v{GG}\nv_lshlrev_b32 v{t1}, 1, v{t1}\nv_xor_b32 v{t1}, v{t1}, v{C}")
        b(f"v_lshl_add_u32 v{DW+j}, v{t1}, 4, v{t0}")
        if j:
            b(f"v_add_u32 v{DW+j}, {j * (32768 - 1024)}, v{DW+j}")
    b("s_waitcnt lgkmcnt(0)")
    b("s_lshl_b32 s38, s36, 8")
    srd(b, SRD_W, 8, f"{W_BYTES}", "s38")
    b(f"s_sub_u32 s{SRD_W+2}, s{SRD_W+2}, s38")
    srd(b, SRD_WS, 10, WS_END)
    b(f"s_mov_b32 s{S_WQ}, 0")
    def demand(st):
        b.extend(dma("W", (st + 2) % 4, S_WQ))
        b(f"s_add_u32 s{S_WQ}, s{S_WQ}, 0x80000")
        b.extend(x_loads(st))

    def touch_x(s0):
        b(f"s_add_u32 s38, s49, {8192 * s0}")
        touch(b, f"buffer_load_dword v{JUNK}, v{T+6}, s[{SRD_WS}:{SRD_WS+3}], s38 offen")

    def touch_w():
        srd(b, 44, 8, W_BYTES)
        b(f"s_lshr_b32 s38, s2, 3\ns_lshl_b32 s38, s38, 4\ns_lshl_b32 s39, s{S_W}, 2\ns_add_u32 s38, s38, s39")
        b(f"v_and_b32 v{t0}, 3, v{LANE}\nv_add_u32 v{t0}, s38, v{t0}\nv_lshrrev_b32 v{t1}, 3, v{t0}")
        b(f"v_and_b32 v{t0}, 7, v{t0}\nv_lshlrev_b32 v{t0}, 7, v{t0}\nv_lshl_add_u32 v{t0}, v{t1}, 13, v{t0}")
        b(f"v_lshrrev_b32 v{t1}, 2, v{LANE}\nv_lshl_add_u32 v{t0}, v{t1}, 19, v{t0}")
        b("s_and_b32 s38, s2, 7\ns_lshl_b32 s38, s38, 10")
        touch(b, f"buffer_load_dword v{JUNK}, v{t0}, s[44:47], s38 offen")

    def touch_kv():
        b(f"v_lshlrev_b32 v{t0}, 7, v{C}\nv_lshl_add_u32 v{t0}, v{GG}, 20, v{t0}\ns_bfe_u32 s38, s37, 0x50000\ns_lshl_b32 s38, s38, 11")
        touch(b, f"buffer_load_dword v{JUNK}, v{t0}, s[{SRD_K}:{SRD_K+3}], s38 offen")
        touch(b, f"buffer_load_dword v{JUNK}, v{t0}, s[{SRD_V}:{SRD_V+3}], s38 offen")

    b("s_lshl_b32 s38, s36, 19")
    srd(b, SRD_K, 4, KV_HEAD_BYTES, "s38")
    srd(b, SRD_V, 6, KV_HEAD_BYTES, "s38")
    b(f"v_lshlrev_b32 v{T+6}, 7, v{C}\nv_lshl_add_u32 v{T+6}, v{GG}, 13, v{T+6}")
    b(f"s_lshr_b32 s49, s2, 3\ns_mul_i32 s49, s49, 81920\ns_lshl_b32 s38, s{S_W}, 11\ns_add_u32 s49, s49, s38")
    for c in opt("start", "0123"):
        if c in "0123":
            demand(int(c))
        elif c == "w":
            touch_w()
        elif c == "k":
            touch_kv()
        elif c == "!":
            b("s_waitcnt vmcnt(0)")
        else:
            touch_x({"a": 0, "b": 4, "c": 8, "x": 1, "y": 5, "z": 9}[c])
    b(f"v_lshlrev_b32 v{t0}, 8, v{GG}\nv_add_u32 v{t0}, s{S_M0}, v{t0}")
    for j in range(4):
        b(f"v_add_u32 v{t1}, {4*j}, v{GG}\nv_xor_b32 v{t1}, v{t1}, v{C}\nv_lshl_add_u32 v{DK+j}, v{t1}, 4, v{t0}")
    for j in range(2):
        b(f"v_add_u32 v{t1}, {4*j}, v{GG}\nv_lshlrev_b32 v{t1}, 1, v{t1}\nv_xor_b32 v{t1}, v{t1}, v{C}")
        b(f"v_lshl_add_u32 v{DV+j}, v{t1}, 4, v{t0}")
    b(f"v_lshrrev_b32 v{t0}, 1, v{GG}\nv_and_b32 v{t1}, 1, v{GG}\nv_lshl_or_b32 v{t0}, v{t1}, 1, v{t0}")
    b(f"v_xor_b32 v{t0}, v{t0}, v{C}\nv_lshlrev_b32 v{t0}, 4, v{t0}\nv_lshl_add_u32 v{KA}, v{C}, 8, v{t0}")
    for ks in range(1, 4):
        b(f"v_xor_b32 v{KA+ks}, {64*ks}, v{KA}")
    b(f"v_bfe_u32 v{R}, v{LANE}, 2, 2\nv_and_b32 v{C}, 3, v{LANE}\nv_lshlrev_b32 v{C}, 3, v{C}\nv_add_u32 v{C}, {VBASE}, v{C}")
    b(f"v_lshl_add_u32 v{t0}, v{GG}, 2, v{R}\nv_and_b32 v{t1}, 7, v{t0}\nv_lshl_add_u32 v{t1}, v{t1}, 5, v{C}")
    b(f"v_lshl_add_u32 v{VA}, v{t0}, 8, v{t1}")
    b(f"v_lshl_add_u32 v{t0}, v{GG}, 3, v{R}\nv_and_b32 v{t1}, 1, v{GG}\nv_lshl_add_u32 v{t1}, v{t1}, 2, v{R}")
    b(f"v_lshl_add_u32 v{t1}, v{t1}, 5, v{C}\nv_lshl_add_u32 v{WA}, v{t0}, 8, v{t1}")
    for db in range(1, 8):
        b(f"v_xor_b32 v{VA+db}, {32*db}, v{VA}\nv_xor_b32 v{WA+db}, {32*db}, v{WA}")
    b(f"s_lshr_b32 s38, s2, 3\ns_min_u32 s38, s38, 26\ns_and_b32 s39, s2, 7\ns_mul_i32 s39, s39, 27\ns_add_u32 s{side.S_J1}, s38, s39")
    b(f"s_mul_i32 s{side.S_STG}, s{S_W}, 6144\ns_add_u32 s{side.S_STG}, s{side.S_STG}, {side.LDS_STG}")
    b(f"v_mov_b32 v{OO}, v{XO}")
    b(f"s_lshl_b32 s40, s37, 19\ns_lshl_b32 s38, s36, 14\ns_add_u32 s40, s40, s38\ns_add_u32 s40, s40, {WS_OF}")
    for k in range(1, 4):
        b(f"s_add_u32 s{40+k}, s40, {4096*k}")
    b(f"s_mov_b32 s{S_C}, {fbits(SCALE)}\ns_mov_b32 s{S_KV}, 0")
    b(f"v_and_b32 v{t0}, 15, v{LANE}\nv_cmp_eq_u32 vcc, 0, v{t0}\nv_mov_b32 v{t0}, 0x3f803f80")
    b(f"v_cndmask_b32 v{t0}, 0, v{t0}, vcc")
    for j in range(4):
        b(f"v_accvgpr_write_b32 a{ONES+j}, v{t0}")


def q_projection(b):
    b("attn_hot:")
    stamp(b, 1)
    b(Wait(tags="V2"))
    b("s_barrier")
    stamp(b, 2)
    b.extend(w_reads(0, 0) + w_reads(0, 1))
    b(Wait(regs=[Xf(0, k, q) for k in range(2) for q in range(4)] + [Vf(0, 0), Vf(0, 1)]))
    vec = []
    KEYS, KT = Q0, Q0 + 8
    extra = []
    for st in range(10):
        if st == 1:
            extra += [Fill(x, lo=24) for x in side.key_loads(KEYS)]
        if st == 3:
            extra += [Fill(x, lo=32) for x in side.route_level1(KEYS, KT)]
        if st == 6:
            for f in extra:
                f.hi = 45
        if st == 7:
            assert not extra
            extra += [Fill(x) for x in side.route_level2(KEYS, KT)]
        if st == 9:
            for f in extra:
                f.hi = 12
        spine = pair_spine(lambda db, qb: v(tile(db, qb), 4), lambda ks2, qb: Xf(st, ks2, qb), st == 0)
        non = []
        put = lambda slot, x, hi=None: non.append((slot, len(non), Fill(x, lo=slot, hi=hi)))
        for db in range(6):
            for k, x in enumerate(w_reads(st, db + 2)):
                put(8 * db + 2 * k, x)
        for db in range(7):
            put(8 * db + 7, v_wait(db + 1), hi=8 * db + 8)
        if 1 <= st <= 6:
            for slot, x in zip((1, 3, 5, 9, 11, 13, 17, 19, 21), x_loads(st + 3)):
                put(slot, x)
        if 5 <= st <= 7:
            d = dma("K", st - 5, S_KV) + [Ins(f"s_add_u32 s{S_KV}, s{S_KV}, 16384")]
            for slot, x in zip((25, 27, 29, 33, 35, 37), d):
                put(slot, x)
        if st == 7:
            put(41, f"s_mov_b32 s{S_KV}, 0")
        put(43, Wait(tags=f"V{(st + 3) % 4}" if st < 9 else "K0"))
        put(45, "s_barrier")
        nxt = w_reads(st + 1, 0) + w_reads(st + 1, 1) if st < 9 else k_reads(0, 0)
        for slot, x in zip((48, 50, 52, 54, 56, 58, 60, 62), nxt):
            put(slot, x)
        if 1 <= st <= 6:
            d = dma("W", (st + 5) % 4, S_WQ) + [Ins(f"s_add_u32 s{S_WQ}, s{S_WQ}, 0x80000")]
        elif st in (7, 8):
            d = dma("V", st - 7, S_KV) + [Ins(f"s_add_u32 s{S_KV}, s{S_KV}, 16384")]
        else:
            d = []
        for slot, x in zip((47, 49, 51, 53, 57, 59), d):
            put(slot, x)
        if st < 9:
            put(63, Wait(regs=[Xf(st + 1, k, q) for k in range(2) for q in range(4)] + [Vf(0, 0), Vf(0, 1)]))
        else:
            put(63, k_wait(0))
            for ks in range(4):
                for qb in range(4):
                    L, sw = q_final(ks, qb)
                    lo = 16 * ks + 8 + 2 * qb + 1 + 4
                    vec += [Fill(x, lo=lo) for x in L[:12]]
                    vec += pend if ks or qb else []
                    pend = [Fill(x, lo=lo) for x in sw]
            vec += pend
        vec, rest = weave(b, spine, vec, [x[2] for x in sorted(non, key=lambda z: z[:2])], flush=False, extra=extra)
        b.extend([f.ins for f in rest])
    return vec


def first_scores(b, carry):
    b.extend([f.ins for f in carry])
    spine = qk_spine(0, lambda kb, qb: 0 if kb < 2 else v(NEG0 + 4 * qb, 4))
    mx = []
    for qb in range(4):
        x, m = S(0, 0, qb), NEG0 + 4 * qb
        mx.append([f"v_max3_f32 v{m}, v{x}, v{x+1}, v{x+2}", f"v_max_f32 v{m}, v{m}, v{x+3}"]
                  + cross_rows("v_max_f32", f"v{m}", f"v{T+qb}")
                  + [f"v_sub_f32 v{m+j}, 0, v{m}" for j in (1, 2, 3, 0)])
    vec = [Fill(x, lo=11, hi=31) for x in interleave(mx[0], mx[1])]
    vec += [Fill(x, lo=19, hi=31) for x in interleave(mx[2], mx[3])]
    held = []
    for i in range(16):
        kb, qb = i >> 2, i & 3
        lo = 4 * i + 7
        if kb < 2:
            x = S(0, kb, qb)
            vec += [Fill(f"v_add_f32 v{x+j}, v{NEG0+4*qb}, v{x+j}", lo=lo) for j in range(4)]
        st = [x for o, x in soft_tile(0, i)]
        vec += [Fill(st[j], lo=lo) for j in (0, 1, 3, 2, 4)] + held
        held = [Fill(st[5], lo=lo)]
    vec += held
    non = []
    for kb in range(3):
        non += [Fill(x, lo=16 * kb + 2 * k) for k, x in enumerate(k_reads(0, kb + 1))]
        non.append(Fill(k_wait(kb + 1), lo=16 * kb + 15, hi=16 * kb + 16))
    non += [Fill(Wait(tags=["K1", "V0"]), lo=48), Fill("s_barrier", lo=49)]
    non += [Fill(x, lo=50 + 2 * k) for k, x in enumerate(k_reads(1, 0))]
    non.append(Fill(k_wait(0), lo=63))
    weave(b, spine, vec, non)


def last_values(b):
    spine = sum_spine(1) + pv_spine(1)
    non, vec = [], []
    for db in range(6):
        non += [(9 + 8 * db + 2 * k, Fill(x, lo=9 + 8 * db + 2 * k)) for k, x in enumerate(v_reads(31, db + 2))]
    non += [(7 + 8 * db, Fill(v_wait(db), lo=7 + 8 * db, hi=8 + 8 * db)) for db in range(8)]
    non = [x[1] for x in sorted(non, key=lambda z: z[0])]
    chk = row_sums(True) + [
        f"v_add_f32 v{T+1}, v{L0}, v{L0+1}", f"v_add_f32 v{T+2}, v{L0+2}, v{L0+3}", f"v_add_f32 v{T+1}, v{T+1}, v{T+2}",
        f"v_lshrrev_b32 v{T+2}, 2, v{XO}", f"v_cmp_nlt_f32 vcc, v{T+1}, s48", f"v_add_u32 v{T+2}, s39, v{T+2}",
        f"v_add_u32 v{T+2}, {FLAG_LDS}, v{T+2}", f"v_cndmask_b32_e64 v{T}, 0, 1, vcc"]
    b(f"s_mov_b32 s48, {fbits(SUM_LIMIT)}\ns_lshl_b32 s39, s{S_W}, 8")
    vec += [Fill(x, lo=11) for x in chk]
    extra = [Fill(x, hi=11) for x in side.ffn2_hidden(WA)]
    n = 0
    for s_ in range(4):
        for qb in range(4):
            L, st = o_final(s_, qb, 8 * (n % 8), NEG0 + 4 * qb)
            lo = 8 + 16 * s_ + 8 + 2 * qb + 1 + 4
            vec += [Fill(x, lo=lo) for x in L] + [Fill(st, lo=lo)]
            n += 1
    weave(b, spine, vec, non, extra=extra)
    b(f"ds_write_b32 v{T+2}, v{T}")
    b.extend(side.ffn2_mfma(WA, WA + 4))


def range_check(b):
    b(f"v_lshlrev_b32 v{T+1}, 0, v{XO}\nv_add_u32 v{T+1}, {FLAG_LDS}, v{T+1}")
    b("s_waitcnt lgkmcnt(0)\ns_barrier")
    b(f"ds_read_b128 {v(T+3,4)}, v{T+1}")
    b.extend(side.ffn2_finish(WA, 64))
    b(f"v_or3_b32 v{T+3}, v{T+3}, v{T+4}, v{T+5}\nv_or_b32 v{T+3}, v{T+3}, v{T+6}")
    b(f"v_cmp_ne_u32 vcc, 0, v{T+3}")
    b("s_cbranch_vccz attn_end")


def fallback(pre, loop, post):
    M0_ = T + 4
    b = pre
    b("s_waitcnt vmcnt(0)")
    for i in range(128):
        b(f"v_accvgpr_write_b32 a{i}, 0")
    for qb in range(4):
        b(f"v_mov_b32 v{L0+qb}, 0\nv_mov_b32 v{M0_+qb}, 0xff800000")
    b(f"s_mov_b32 s{S_KV}, 0")
    b = loop
    b("attn_slow:\ns_barrier")
    b.extend(dma("K", 0, S_KV) + dma("V", 0, S_KV))
    b("s_waitcnt vmcnt(0)\ns_barrier")
    spine = qk_spine(0, lambda kb, qb: 0)
    for kb in range(4):
        b.extend(k_reads(0, kb))
        b.extend(spine[16 * kb:16 * kb + 16])
    for qb in range(4):
        m, al, t = NEG0 + 4 * qb, NEG0 + 4 * qb + 1, T
        xs = [S(0, kb, qb) + j for kb in range(4) for j in range(4)]
        b(f"v_mov_b32 v{m}, v{M0_+qb}")
        for k in range(0, 16, 2):
            b(f"v_max3_f32 v{m}, v{m}, v{xs[k]}, v{xs[k+1]}")
        b.extend(cross_rows("v_max_f32", f"v{m}", f"v{t}"))
        b(f"v_sub_f32 v{al}, v{M0_+qb}, v{m}\nv_exp_f32 v{al}, v{al}\nv_mov_b32 v{M0_+qb}, v{m}")
        b(f"v_mul_f32 v{L0+qb}, v{L0+qb}, v{al}")
        for x in xs:
            b(f"v_sub_f32 v{x}, v{x}, v{m}")
        for kb in range(4):
            b.extend([x for _, x in soft_tile(0, 4 * kb + qb, sums=True)])
        for db in range(8):
            o = tile(db, qb)
            b.extend([f"v_accvgpr_read_b32 v{64+j}, a{o+j}" for j in range(4)])
            b.extend([f"v_mul_f32 v{64+j}, v{64+j}, v{al}" for j in range(4)])
            b.extend([f"v_accvgpr_write_b32 a{o+j}, v{64+j}" for j in range(4)])
    spine = pv_spine(0)
    for db in range(8):
        b.extend(v_reads(0, db))
        b.extend(spine[8 * db:8 * db + 8])
    b(f"s_add_u32 s{S_KV}, s{S_KV}, 16384\ns_cmp_lt_u32 s{S_KV}, {KV_HEAD_BYTES}\ns_cbranch_scc1 attn_slow")
    b = post
    b.extend(row_sums(False))
    n = 0
    for s_ in range(4):
        for qb in range(4):
            L, st = o_final(s_, qb, 8 * (n % 8), NEG0 + 4 * qb)
            b.extend(L + [st])
            n += 1


def build():
    names = ("setup", "qproj", "first", "peel", "loop", "pre_last", "spin", "last", "fpre", "floop", "fpost", "end")
    blk = {n: Block(n) for n in names}
    setup(blk["setup"])
    carry = q_projection(blk["qproj"])
    stamp(blk["qproj"], 3)
    first_scores(blk["first"], carry)
    stamp(blk["first"], 4)
    E = WA

    def spread(items, slots):
        out, k, lo = [], 0, 0
        for x in items:
            f = Fill(x)
            if "m0" in f.ins.wr:
                lo = slots[k]
                k += 1
            f.lo = lo
            out.append(f)
        return out

    f1 = spread(side.ffn1_loads(E + 2), (57, 85, 113) * 2)
    cut = [j for j, f in enumerate(f1) if "m0" in f.ins.wr][3]
    f1m = [Fill(x) for x in side.ffn1_mfma(E, E + 4)]
    f1m[-1].hi = 122
    plan = [spread(side.wof_loads(E), (57, 73, 89, 105, 121)),
            [],
            [Fill(x) for x in side.wof_stores(E)] + f1[:cut],
            f1[cut:],
            [],
            f1m + spread(side.ffn2_weights(E), (0, 0, 0)),
            [Fill(x) for x in side.ffn1_finish(E, E + 4, DW)]]
    for f in plan[5][len(f1m):]:
        f.lo = 123 if f.ins.kind == "dma" or "m0" in f.ins.wr else 0
    for t, extra in enumerate(plan):
        iteration(blk["peel"], t, first=(t == 0), extra=extra)
        blk["peel"].extend([f.ins for f in extra])
        if extra:
            print("iteration", t, "left", len(extra))
    blk["peel"](f"s_mov_b32 s{S_CNT}, 6")
    stamp(blk["peel"], 5)
    b = blk["loop"]
    b("attn_loop:")
    for t in range(7, 11):
        extra = [Fill(x) for x in side.signal()] if t == 8 else [Fill(side.poll())] if t == 10 else []
        iteration(b, t, tail_salu=[f"s_sub_u32 s{S_CNT}, s{S_CNT}, 1", f"s_cmp_lg_u32 s{S_CNT}, 0"] if t == 10 else [],
                  extra=extra, wait_tags=["h"] if t == 7 else [])
        assert not extra
    b("s_cbranch_scc1 attn_loop")
    b = blk["pre_last"]
    stamp(b, 6)
    b.extend(v_reads(31, 0) + v_reads(31, 1))
    b(f"v_readfirstlane_b32 s38, v{side.V_POLL}\ns_cmp_ge_u32 s38, 256\ns_cbranch_scc1 attn_h_ready")
    b = blk["spin"]
    b(f"s_mov_b32 s39, 0x100000\nattn_spin:\ns_sleep 4\n{side.poll()}\ns_waitcnt vmcnt(0)")
    b(f"v_readfirstlane_b32 s38, v{side.V_POLL}\ns_cmp_ge_u32 s38, 256\ns_cbranch_scc1 attn_h_ready")
    b("s_sub_u32 s39, s39, 1\ns_cmp_lg_u32 s39, 0\ns_cbranch_scc1 attn_spin")
    blk["last"]("attn_h_ready:")
    last_values(blk["last"])
    stamp(blk["last"], 7)
    if common.STAMPS:
        blk["last"]("s_waitcnt vmcnt(0)")
    stamp(blk["last"], 8)
    stamp(blk["last"], 11, real=True)
    stamp_flush(blk["last"], 12, 0, 10, S_W, 64)
    if common.STAMPS:
        blk["last"]("s_mov_b64 exec, -1")
    range_check(blk["last"])
    fallback(blk["fpre"], blk["floop"], blk["fpost"])
    blk["end"]("attn_end:\ns_endpgm")
    p = lambda *n: [blk[x] for x in n]
    paths = [p("setup", "qproj", "first", "peel", "loop", "loop", "pre_last", "last", "fpre", "floop", "floop", "fpost", "end"),
             p("loop", "pre_last", "spin", "last")]
    text = finalize(p(*names), paths)
    return dict(name=NAME, text=entry(NAME) + "\n" + text, desc=descriptor(NAME, 512, 102, 256),
                grid=256, block=256, lds=side.LDS_END, blocks=blk)
```

```python
import common
from common import *

NAME = "out_kernel"

ACC = 0
XR = 80
BV = 90
VB = 110
VA = 114
VO = 117
VW = 118
VR = 121
T = 122
BUF3 = 136
S_B, S_A, S_CNT = 30, 31, 32


def acc(mb, q):
    return ACC + (mb * 4 + q) * 4


def frag(buf, i):
    return v(BUF3 + 4 * i, 4) if buf == 3 else a(buf * 72 + 4 * i, 4)


def group_loads(buf):
    L = []
    order = [("b", 0, 0), ("b", 0, 1), ("a", 0, 0), ("a", 1, 0)]
    order += [("b", q, kk) for q in range(1, 4) for kk in range(2)]
    order += [("a", kk, mb) for mb in range(1, 5) for kk in range(2)]
    for kind, i, j in order:
        if kind == "b":
            L.append(f"buffer_load_dwordx4 {frag(buf, 2*i+j)}, v{VB+i}, s[24:27], s{S_B} offen offset:{1024*j}")
        else:
            f = 5 * i + j
            L.append(f"buffer_load_dwordx4 {frag(buf, 8+f)}, v{VA+f//4}, s[24:27], s{S_A} offen offset:{1024*(f%4)}")
    L += [f"s_add_u32 s{S_B}, s{S_B}, 8192", f"s_add_u32 s{S_A}, s{S_A}, 10240"]
    return L


def group(b, buf, prefetch, vec=(), extra_non=()):
    spine = []
    for mb in range(5):
        for q in range(4):
            for step in range(2):
                kk = step if q % 2 == 0 else 1 - step
                d = v(acc(mb, q), 4)
                spine.append(f"v_mfma_f32_16x16x32_bf16 {d}, {frag(buf, 8+5*kk+mb)}, {frag(buf, 2*q+kk)}, {d}")
    b(Wait(regs=[frag(buf, i) for i in list(range(8)) + [8, 13]]))
    non = [Fill(x) for x in group_loads((buf + 3) % 4)] if prefetch else []
    rest = Fill(Wait(regs=[frag(buf, i) for i in range(18)]), lo=6, hi=8)
    non.insert(min(6, len(non)), rest)
    non += [Fill(x, lo=30) for x in extra_non]
    return weave(b, spine, vec if vec else [], non, flush=False)


def build():
    head, slow, pre, loop, tail, end = (Block(n) for n in ("head", "slow", "pre", "loop", "tail", "end"))
    b = head
    b("s_cmp_ge_u32 s2, 256\ns_cbranch_scc1 out_end")
    stamp(b, 0)
    stamp(b, 10, real=True)
    b(f"s_load_dwordx2 s[4:5], s[0:1], {KA_X}\ns_load_dwordx2 s[6:7], s[0:1], {KA_OUT}\ns_load_dwordx2 s[8:9], s[0:1], {KA_WS}")
    if opt("codepf", "1") == "1":
        code_prefetch(b, 46, T, T + 13, "out_hot", "out_end", 1)
        b("out_hot:")
    b(f"v_lshrrev_b32 v{T}, 6, v0\nv_and_b32 v{T+1}, 63, v0")
    b(f"v_readfirstlane_b32 s3, v{T}")
    b("s_and_b32 s10, s2, 7\ns_lshr_b32 s11, s2, 3")
    b("s_lshr_b32 s28, s10, 1\ns_lshl_b32 s28, s28, 3\ns_and_b32 s29, s11, 7\ns_add_u32 s28, s28, s29")
    b("s_and_b32 s29, s10, 1\ns_lshl_b32 s29, s29, 2\ns_lshr_b32 s11, s11, 3\ns_add_u32 s29, s29, s11")
    LANE, N, G = T + 1, T + 2, T + 3
    b(f"v_and_b32 v{N}, 15, v{LANE}\nv_lshrrev_b32 v{G}, 4, v{LANE}\nv_lshlrev_b32 v{VA}, 4, v{LANE}")
    b(f"v_add_u32 v{VA+1}, 0x1000, v{VA}\nv_add_u32 v{VA+2}, 0x2000, v{VA}")
    for q in range(4):
        b(f"s_add_u32 s10, s3, {q}\ns_and_b32 s10, s10, 3\ns_lshl_b32 s11, s10, 11\nv_add_u32 v{VB+q}, s11, v{VA}")
        if q:
            b(f"s_mul_i32 s10, s10, 15360\ns_add_u32 s10, s10, {(q-1)*5120}\nv_add_u32 v{VW+q-1}, s10, v{VA}")
    b(f"s_mul_i32 s10, s3, 15360\nv_add_u32 v{VR}, s10, v{VA}")
    b(f"s_lshl_b32 s{S_B}, s28, 19\ns_lshl_b32 s10, s3, 17\ns_add_u32 s{S_B}, s{S_B}, s10\ns_add_u32 s{S_B}, s{S_B}, {WS_OF}")
    b(f"s_mul_i32 s{S_A}, s29, 655360\ns_mul_i32 s10, s3, 163840\ns_add_u32 s{S_A}, s{S_A}, s10\ns_add_u32 s{S_A}, s{S_A}, {WS_WOF}")
    TOK = T + 4
    b(f"s_lshl_b32 s10, s28, 6\ns_lshl_b32 s11, s3, 4\ns_add_u32 s10, s10, s11\nv_add_u32 v{TOK}, s10, v{N}")
    b(f"v_mul_u32_u24 v{VO}, 0x500, v{TOK}\nv_lshl_add_u32 v{VO}, v{G}, 3, v{VO}\ns_mul_i32 s11, s29, 160\nv_add_u32 v{VO}, s11, v{VO}")
    b("s_waitcnt lgkmcnt(0)")
    srd(b, 24, 8, WS_END)
    srd(b, 12, 4, X_BYTES)
    srd(b, 16, 6, X_BYTES)
    b(f"s_add_u32 s44, s8, {WS_TOP}\ns_addc_u32 s45, s9, 0\ns_load_dwordx8 s[36:43], s[44:45], 0")
    b(f"s_mul_i32 s10, s28, 81920\ns_lshl_b32 s11, s3, 10\ns_add_u32 s10, s10, s11")
    b(f"s_mul_i32 s11, s29, 10\nv_lshrrev_b32 v{T+5}, 1, v{G}\nv_add_u32 v{T+5}, s11, v{T+5}")
    b(f"v_and_b32 v{T+6}, 1, v{G}\nv_lshlrev_b32 v{T+6}, 3, v{T+6}\nv_lshl_add_u32 v{T+6}, v{N}, 4, v{T+6}")
    XN = BUF3
    for mb in range(5):
        b(f"v_lshrrev_b32 v{T+7}, 2, v{T+5}\nv_lshl_add_u32 v{T+7}, v{T+7}, 12, v{T+6}")
        b(f"v_and_b32 v{T+8}, 3, v{T+5}\nv_lshl_add_u32 v{T+7}, v{T+8}, 8, v{T+7}")
        b(f"buffer_load_dwordx2 {v(XN+2*mb,2)}, v{T+7}, s[24:27], s10 offen")
        b(f"v_add_u32 v{T+5}, 2, v{T+5}")
    for g in range(3):
        b.extend(group_loads(g))
    stamp(b, 1)
    b("s_mov_b32 s33, 0xffff0000")
    for i in range(10):
        b(f"v_lshlrev_b32 v{BV+2*i}, 16, v{XN+i}\nv_and_b32 v{BV+2*i+1}, s33, v{XN+i}")
    for mb in range(5):
        b(f"buffer_load_dwordx2 {v(XR+2*mb,2)}, v{VO}, s[12:15], 0 offen offset:{32*mb}")
    SLOT = T + 5
    b(f"v_mov_b32 v{SLOT}, -1")
    for e in range(8):
        b(f"s_and_b32 s{36+e}, s{36+e}, 0xffff\ns_sub_u32 s{36+e}, 0xffff, s{36+e}")
        b(f"v_cmp_eq_u32 vcc, s{36+e}, v{TOK}\nv_cndmask_b32_e64 v{SLOT}, v{SLOT}, {e}, vcc")
    b(f"v_cmp_ne_u32 vcc, -1, v{SLOT}\ns_and_saveexec_b64 s[34:35], vcc\ns_cbranch_execz out_noroute")

    b = slow
    b("s_waitcnt vmcnt(28)")
    b(f"v_lshlrev_b32 v{T+6}, 2, v{SLOT}\ns_mov_b32 s10, {WS_TOP}")
    b(f"buffer_load_dword v{T+7}, v{T+6}, s[24:27], s10 offen")
    b(f"v_mul_u32_u24 v{T+6}, 0xa00, v{SLOT}\nv_lshl_add_u32 v{T+6}, v{G}, 4, v{T+6}")
    b(f"s_mul_i32 s10, s29, 320\ns_add_u32 s10, s10, {WS_YP}")
    yp = lambda p, mb: (ACC + 4 * (p * 5 + mb)) if p < 4 else (BUF3 + 16 + 4 * ((p - 4) * 5 + mb))
    for p in range(6):
        for mb in range(5):
            b(f"buffer_load_dwordx4 {v(yp(p,mb),4)}, v{T+6}, s[24:27], s10 offen offset:{64*mb}")
        b("s_add_u32 s10, s10, 20480")
    b("s_waitcnt vmcnt(0)")
    k, m = T + 7, T + 8
    b(f"v_ashrrev_i32 v{m}, 31, v{k}\nv_not_b32 v{m}, v{m}\nv_or_b32 v{m}, 0x80000000, v{m}")
    b(f"v_xor_b32 v{k}, v{k}, v{m}\nv_and_b32 v{k}, s33, v{k}")
    b(f"v_mul_f32 v{k}, {fbits(-LOG2E)}, v{k}\nv_exp_f32 v{k}, v{k}\nv_add_f32 v{k}, 1.0, v{k}\nv_rcp_f32 v{k}, v{k}")
    b.extend(bf16_round(f"v{k}", f"v{k}"))
    for mb in range(5):
        for j in range(4):
            y = yp(0, mb) + j
            for p in range(1, 6):
                b(f"v_add_f32 v{y}, v{y}, v{yp(p,mb)+j}")
            b.extend(bf16_round(f"v{y}", f"v{y}"))
            b(f"v_mul_f32 v{y}, v{y}, v{T+7}")
            b.extend(bf16_round(f"v{y}", f"v{y}"))
            x = BV + 4 * mb + j
            b(f"v_add_f32 v{x}, v{x}, v{y}")
            b.extend(bf16_round(f"v{x}", f"v{x}"))

    b = pre
    b("out_noroute:\ns_mov_b64 exec, s[34:35]")
    for i in range(80):
        b(f"v_mov_b32 v{ACC+i}, 0")
    b(f"s_mov_b32 s{S_CNT}, 3")
    stamp(b, 2)

    b = loop
    b("out_loop:")
    for g in range(4):
        extra = [f"s_sub_u32 s{S_CNT}, s{S_CNT}, 1", f"s_cmp_lg_u32 s{S_CNT}, 0"] if g == 3 else []
        left = group(b, g, True, extra_non=extra)
        assert left == ([], [])
    b("s_cbranch_scc1 out_loop")

    b = tail
    stamp(b, 3)
    gate = []
    for i in range(0, 20, 4):
        gate += interleave(*[silu(f"v{BV+i+j}", f"v{BV+i+j}", f"v{T+6+j}") + bf16_round(f"v{BV+i+j}", f"v{BV+i+j}")
                             for j in range(4)])
    vec = [Fill(x) for x in gate]
    for g in range(4):
        vec, non = group(b, g, g == 0, vec=vec)
        assert not non
    assert not vec
    stamp(b, 4)
    for q in range(1, 4):
        for mb in range(5):
            b(f"ds_write_b128 v{VW+q-1}, {v(acc(mb,q),4)} offset:{1024*mb}")
    b("s_waitcnt lgkmcnt(0)\ns_barrier")
    stamp(b, 5)
    P = BUF3
    for mb in range(5):
        for i in range(3):
            b(f"ds_read_b128 {v(P+4*(3*mb+i),4)}, v{VR} offset:{5120*i+1024*mb}")
    for mb in range(5):
        y = acc(mb, 0)
        p = P + 12 * mb
        for j in range(4):
            b(f"v_add_f32 v{p+j}, v{p+j}, v{p+4+j}\nv_add_f32 v{y+j}, v{y+j}, v{p+8+j}")
        for j in range(4):
            b(f"v_add_f32 v{y+j}, v{y+j}, v{p+j}")
        for j in range(2):
            b(f"v_cvt_pk_bf16_f32 v{p+j}, v{y+2*j}, v{y+2*j+1}")
        for j in range(2):
            b(f"v_lshlrev_b32 v{y+2*j}, 16, v{p+j}\nv_and_b32 v{y+2*j+1}, s33, v{p+j}")
        for j in range(4):
            b(f"v_mul_f32 v{y+j}, v{y+j}, v{BV+4*mb+j}")
        for j in range(2):
            b(f"v_cvt_pk_bf16_f32 v{p+j}, v{y+2*j}, v{y+2*j+1}")
        for j in range(2):
            b(f"v_lshlrev_b32 v{y+2*j}, 16, v{p+j}\nv_and_b32 v{y+2*j+1}, s33, v{p+j}")
            b(f"v_lshlrev_b32 v{p+4+2*j}, 16, v{XR+2*mb+j}\nv_and_b32 v{p+5+2*j}, s33, v{XR+2*mb+j}")
        for j in range(4):
            b(f"v_add_f32 v{y+j}, v{y+j}, v{p+4+j}")
        for j in range(2):
            b(f"v_cvt_pk_bf16_f32 v{p+j}, v{y+2*j}, v{y+2*j+1}")
        b(f"buffer_store_dwordx2 {v(p,2)}, v{VO}, s[16:19], 0 offen offset:{32*mb}")
    stamp(b, 6)
    if common.STAMPS:
        b("s_waitcnt vmcnt(0)")
    stamp(b, 7)
    stamp(b, 11, real=True)
    stamp_flush(b, 12, 1, 8, 3, 200)
    end("out_end:\ns_endpgm")
    blocks = [head, slow, pre, loop, tail, end]
    paths = [[head, pre, loop, loop, tail, end], [head, slow, pre, loop, loop, tail, end]]
    text = finalize(blocks, paths)
    return dict(name=NAME, text=entry(NAME) + "\n" + text, desc=descriptor(NAME, 512, 96, 256),
                grid=256, block=256, lds=61440)
```

```python
from common import *

NAME = "prep_kernel"


def build():
    head, ln, end = Block("head"), Block("ln"), Block("end")
    b = head
    b("s_cmp_ge_u32 s2, 256\ns_cbranch_scc1 prep_end")
    b(f"s_load_dwordx2 s[4:5], s[0:1], {KA_X}")
    b(f"s_load_dwordx2 s[8:9], s[0:1], {KA_WR}\ns_load_dwordx2 s[10:11], s[0:1], {KA_WS}")
    if opt("codepf", "1") == "1":
        code_prefetch(b, 6, 1, 106, "prep_hot", "prep_end", 1)
        b("prep_hot:")
    b("v_lshrrev_b32 v1, 6, v0\nv_and_b32 v0, 63, v0")
    b("v_readfirstlane_b32 s3, v1")
    b("s_waitcnt lgkmcnt(0)")
    srd(b, 12, 4, X_BYTES)
    srd(b, 20, 8, 1280)
    srd(b, 24, 10, WS_OF)

    b = ln
    XP, WP, XF = 8, 28, 48
    b("s_lshl_b32 s28, s2, 3\ns_lshl_b32 s29, s3, 2\ns_add_u32 s28, s28, s29")
    b("s_mul_i32 s29, s28, 1280")
    b("v_lshrrev_b32 v1, 4, v0\nv_and_b32 v2, 15, v0")
    b("v_lshlrev_b32 v3, 4, v2\nv_mul_u32_u24 v4, 0x500, v1\nv_add_u32 v4, v4, v3")
    for i in range(5):
        b(f"buffer_load_dwordx4 {v(XP+4*i,4)}, v4, s[12:15], s29 offen offset:{256*i}")
    for i in range(5):
        b(f"buffer_load_dwordx4 {v(WP+4*i,4)}, v3, s[20:23], 0 offen offset:{256*i}")
    b("s_lshr_b32 s30, s28, 6\ns_mul_i32 s30, s30, 81920")
    b("s_bfe_u32 s31, s28, 0x20004\ns_lshl_b32 s31, s31, 10\ns_add_u32 s30, s30, s31")
    b("s_and_b32 s31, s28, 15\ns_lshl_b32 s31, s31, 4\ns_add_u32 s30, s30, s31")
    b("v_lshrrev_b32 v5, 2, v2\nv_lshlrev_b32 v5, 12, v5\nv_and_b32 v6, 3, v2")
    b("v_lshl_add_u32 v5, v6, 8, v5\nv_lshl_add_u32 v5, v1, 4, v5")
    b("s_mov_b32 s33, 0xffff0000")
    for i in range(20):
        b(f"v_lshlrev_b32 v{XF+2*i}, 16, v{XP+i}\nv_and_b32 v{XF+2*i+1}, s33, v{XP+i}")
    A0, A1, M = 88, 90, 92
    b(f"v_pk_add_f32 {v(A0,2)}, {v(XF,2)}, {v(XF+2,2)}\nv_pk_add_f32 {v(A1,2)}, {v(XF+4,2)}, {v(XF+6,2)}")
    for i in range(4, 20):
        acc = A0 if i % 2 == 0 else A1
        b(f"v_pk_add_f32 {v(acc,2)}, {v(acc,2)}, {v(XF+2*i,2)}")
    b(f"v_pk_add_f32 {v(A0,2)}, {v(A0,2)}, {v(A1,2)}\nv_add_f32 v{M}, v{A0}, v{A0+1}")
    b.extend(row_reduce("v_add_f32", f"v{M}"))
    b(f"v_mul_f32 v{M}, {fbits(1/640)}, v{M}")
    D = 94
    for i in range(20):
        acc = A0 if i % 2 == 0 else A1
        d = D + 2 * (i % 2)
        b(f"v_pk_add_f32 {v(d,2)}, {v(XF+2*i,2)}, {v(M,2)} op_sel_hi:[1,0] neg_lo:[0,1] neg_hi:[0,1]")
        if i < 2:
            b(f"v_pk_mul_f32 {v(acc,2)}, {v(d,2)}, {v(d,2)}")
        else:
            b(f"v_pk_fma_f32 {v(acc,2)}, {v(d,2)}, {v(d,2)}, {v(acc,2)}")
    VAR, RS = 98, 100
    b(f"v_pk_add_f32 {v(A0,2)}, {v(A0,2)}, {v(A1,2)}\nv_add_f32 v{VAR}, v{A0}, v{A0+1}")
    b.extend(row_reduce("v_add_f32", f"v{VAR}"))
    b(f"v_mul_f32 v{VAR}, {fbits(1/640)}, v{VAR}")
    b.extend(bf16_round(f"v{M}", f"v{M}"))
    b.extend(bf16_round(f"v{VAR}", f"v{VAR}"))
    b(f"v_add_f32 v{VAR}, {fbits(1e-5)}, v{VAR}")
    b.extend(bf16_round(f"v{VAR}", f"v{VAR}"))
    b(f"v_sqrt_f32 v{VAR}, v{VAR}")
    b.extend(bf16_round(f"v{VAR}", f"v{VAR}"))
    b(f"v_rcp_f32 v{RS}, v{VAR}")
    R0 = 104
    b(f"v_mov_b32 v{R0}, 0\nv_mov_b32 v{R0+1}, 0")
    for i in range(20):
        x = XF + 2 * i
        b(f"v_pk_add_f32 {v(x,2)}, {v(x,2)}, {v(M,2)} op_sel_hi:[1,0] neg_lo:[0,1] neg_hi:[0,1]")
    for i in range(20):
        x = XF + 2 * i
        b(f"v_cvt_pk_bf16_f32 v{XP+i}, v{x}, v{x+1}")
    for i in range(20):
        x = XF + 2 * i
        b(f"v_lshlrev_b32 v{x}, 16, v{XP+i}\nv_and_b32 v{x+1}, s33, v{XP+i}")
    for i in range(20):
        x = XF + 2 * i
        b(f"v_pk_mul_f32 {v(x,2)}, {v(x,2)}, {v(RS,2)} op_sel_hi:[1,0]")
    for i in range(20):
        x = XF + 2 * i
        b(f"v_cvt_pk_bf16_f32 v{XP+i}, v{x}, v{x+1}")
        if i % 4 == 3:
            k = i // 4
            b(f"buffer_store_dwordx4 {v(XP+4*k,4)}, v5, s[24:27], s30 offen")
            b("s_add_u32 s30, s30, 16384")
    for i in range(20):
        b(f"v_dot2_f32_bf16 v{R0+i%2}, v{XP+i}, v{WP+i}, v{R0+i%2}")
    b("s_nop 2")
    b(f"v_add_f32 v{R0}, v{R0}, v{R0+1}")
    b.extend(row_reduce("v_add_f32", f"v{R0}"))
    b(f"v_cvt_pk_bf16_f32 v{R0}, v{R0}, v{R0}\nv_lshlrev_b32 v{R0}, 16, v{R0}")
    b(f"v_ashrrev_i32 v{R0+1}, 31, v{R0}\nv_or_b32 v{R0+1}, 0x80000000, v{R0+1}")
    b(f"v_xor_b32 v{R0}, v{R0}, v{R0+1}\nv_and_b32 v{R0}, s33, v{R0}")
    b(f"v_add_u32 v6, s28, v1\nv_sub_u32 v7, 0xffff, v6\nv_or_b32 v{R0}, v{R0}, v7")
    b(f"v_lshlrev_b32 v6, 2, v6\ns_mov_b32 s31, {WS_RK}")
    b("v_cmp_eq_u32 vcc, 0, v2\ns_and_saveexec_b64 s[34:35], vcc")
    b(f"buffer_store_dword v{R0}, v6, s[24:27], s31 offen")
    end("prep_end:\ns_endpgm")
    text = finalize([head, ln, end], [[head, ln, end]])
    return dict(name=NAME, text=entry(NAME) + "\n" + text, desc=descriptor(NAME, 108, 48, 108),
                grid=256, block=128, lds=0)
```

```python
from common import *

MF = "v_mfma_f32_16x16x32_bf16"
SPARE = 131072
LDS_FLAG, LDS_TOP, LDS_PART, LDS_STG = SPARE, SPARE + 1024, SPARE + 2048, SPARE + 6144
LDS_END = LDS_STG + 24576
OOB = 0x40000000

S_W, SRD_WS, AUX1, AUX2 = 3, 24, 20, 44
S_J1, S_T0, S_T1, S_STG, S_PREV, S_KEY, S_TT = 33, 35, 38, 50, 51, 52, 98
P_WO, P_WG, P_WU, P_WD, P_DBG = 88, 90, 92, 94, 96
XO = 242
A_B, A_A = 212, 232
V_SIG, V_ONE, V_POLL = 249, 250, 254
WS = f"s[{SRD_WS}:{SRD_WS+3}]"


def lines(text):
    return [x for x in text.split("\n") if x.strip()]


def srd_list(d, ptr, size):
    return [f"s_mov_b32 s{d}, s{ptr}", f"s_mov_b32 s{d+1}, s{ptr+1}", f"s_mov_b32 s{d+2}, {size}", f"s_mov_b32 s{d+3}, 0x20000"]


def lane_of(dst):
    return [f"v_lshrrev_b32 v{dst}, 4, v{XO}"]


def key_loads(K):
    return [f"s_lshl_b32 s{S_T0}, s{S_W}, 11", f"s_add_u32 s{S_T0}, s{S_T0}, {WS_RK}",
            f"buffer_load_dwordx4 {v(K,4)}, v{XO}, {WS}, s{S_T0} offen",
            f"buffer_load_dwordx4 {v(K+4,4)}, v{XO}, {WS}, s{S_T0} offen offset:1024"]


def route_level1(K, t):
    L = [Wait(regs=[v(K, 8)])] + top8(K, 8, t, S_PREV, S_TT, S_KEY)
    L += [f"v_writelane_b32 v{t}, s{S_KEY+e}, {e}" for e in range(8)]
    L += [f"s_lshl_b32 s{S_T0}, s{S_W}, 8", f"s_add_u32 s{S_T0}, s{S_T0}, {LDS_TOP}",
          f"v_lshrrev_b32 v{t+1}, 2, v{XO}", f"v_add_u32 v{t+1}, s{S_T0}, v{t+1}",
          Ins(f"ds_write_b32 v{t+1}, v{t}", "top"), Wait(tags="top")]
    return L


def route_level2(K, t):
    L = lane_of(t) + lines(f"""v_bfe_u32 v{t+1}, v{t}, 3, 2
v_and_b32 v{t+2}, 7, v{t}
v_lshlrev_b32 v{t+1}, 8, v{t+1}
v_lshl_add_u32 v{t+1}, v{t+2}, 2, v{t+1}
v_add_u32 v{t+1}, {LDS_TOP}, v{t+1}
ds_read_b32 v{K}, v{t+1}""") + [Wait(regs=v(K))]
    L += top8(K, 1, t + 1, S_PREV, S_TT, S_KEY, rows=2)
    L += [f"v_mov_b32 v{K}, 0"] + [f"v_writelane_b32 v{K}, s{S_KEY+e}, {e}" for e in range(8)]
    L += lines(f"""s_cmp_eq_u32 s2, 0
s_cselect_b32 s{S_T0}, 0, {OOB}
v_lshrrev_b32 v{t+1}, 3, v{t}
v_lshlrev_b32 v{t+1}, 28, v{t+1}
v_lshl_add_u32 v{t+1}, v{t}, 2, v{t+1}
v_or_b32 v{t+1}, s{S_T0}, v{t+1}
s_mov_b32 s{S_T0}, {WS_TOP}
buffer_store_dword v{K}, v{t+1}, {WS}, s{S_T0} offen
v_and_b32 v{K+1}, 0xffff, v{K}
v_sub_u32 v{K+1}, 0xffff, v{K+1}
v_and_b32 v{K+1}, 0x7ff, v{K+1}
v_mov_b32 v{K+2}, v{K+1}
v_permlane16_swap_b32 v{K+1}, v{K+2}
v_mov_b32 v{K+2}, v{K+1}
v_permlane32_swap_b32 v{K+1}, v{K+2}
v_lshrrev_b32 v{K+2}, 6, v{K+1}
v_mul_u32_u24 v{K+2}, 0x14000, v{K+2}
v_bfe_u32 v{K+3}, v{K+1}, 4, 2
v_lshl_add_u32 v{K+2}, v{K+3}, 10, v{K+2}
v_and_b32 v{K+3}, 15, v{K+1}
v_lshl_add_u32 v{K+2}, v{K+3}, 4, v{K+2}
v_lshrrev_b32 v{K+3}, 4, v{t}
v_lshl_add_u32 v{K+2}, v{K+3}, 8, v{K+2}
s_mul_i32 s{S_T0}, s{S_W}, 20480""")
    for k in range(5):
        L += [f"buffer_load_dwordx4 {a(A_B+4*k,4)}, v{K+2}, {WS}, s{S_T0} offen", f"s_add_u32 s{S_T0}, s{S_T0}, 4096"]
    return L


def ffn1_loads(t):
    L = srd_list(AUX1, P_WG, WF_BYTES) + srd_list(AUX2, P_WU, WF_BYTES)
    L += lane_of(t) + [f"v_mul_u32_u24 v{t}, 0xd80, v{t}", f"s_mul_i32 s{S_T0}, s{S_W}, {160*3456}",
                       f"s_lshl_b32 s{S_T1}, s{S_J1}, 4", f"s_add_u32 s{S_T0}, s{S_T0}, s{S_T1}"]
    for i in range(3):
        for m, d in enumerate((AUX1, AUX2)):
            L += lds_dma(f"s_add_u32 m0, s{S_STG}, {m*3072+i*1024}",
                         [f"buffer_load_dwordx4 v{t}, s[{d}:{d+3}], s{S_T0} offen lds"], "f1w")
        L.append(f"s_add_u32 s{S_T0}, s{S_T0}, {64*3456}")
    return L


def natural_rows(dst, lane, tmp, shift):
    return lines(f"""v_lshrrev_b32 v{dst}, 4, v{lane}
v_bfe_u32 v{tmp}, v{lane}, 2, 2
v_lshl_add_u32 v{dst}, v{dst}, 3, v{tmp}
v_lshlrev_b32 v{dst}, {shift}, v{dst}""")


def part_write(acc, t):
    return [f"s_lshl_b32 s{S_T0}, s{S_W}, 10", f"s_add_u32 s{S_T0}, s{S_T0}, {LDS_PART}",
            f"v_add_u32 v{t}, s{S_T0}, v{XO}", Ins(f"ds_write_b128 v{t}, {v(acc,4)}", "part"), Wait(tags="part")]


def ffn1_mfma(t, acc):
    L = lane_of(t) + natural_rows(t + 1, t, t + 2, 4) + lines(f"""v_bfe_u32 v{t+2}, v{t}, 1, 1
v_mul_u32_u24 v{t+2}, 0xc00, v{t+2}
v_add3_u32 v{t+1}, v{t+1}, v{t+2}, s{S_STG}
v_and_b32 v{t+2}, 1, v{t}
v_lshl_add_u32 v{t+1}, v{t+2}, 3, v{t+1}""")
    L.append(Wait(regs=[a(A_B, 20)], tags="f1w"))
    L += [f"ds_read_b64_tr_b16 {a(A_A+4*k+2*h,2)}, v{t+1} offset:{512*k+64*h}" for k in range(5) for h in range(2)]
    L.append(Wait(regs=[a(A_A, 20)]))
    L += [f"{MF} {v(acc,4)}, {a(A_A+4*k,4)}, {a(A_B+4*k,4)}, {v(acc,4) if k else 0}" for k in range(5)]
    return L + part_write(acc, t)


def ffn1_finish(t, g, u):
    L = lane_of(t) + lines(f"""v_bfe_u32 v{t+1}, v{t}, 2, 1
v_lshlrev_b32 v{t+1}, 8, v{t+1}
v_lshrrev_b32 v{t+2}, 3, v{t}
v_lshl_add_u32 v{t+1}, v{t+2}, 4, v{t+1}
v_and_b32 v{t+3}, 3, v{t}
v_lshl_add_u32 v{t+1}, v{t+3}, 2, v{t+1}
v_add_u32 v{t+1}, {LDS_PART}, v{t+1}""")
    L += [f"ds_read_b32 v{x+w}, v{t+1} offset:{1024*w+512*m}" for m, x in enumerate((g, u)) for w in range(4)]
    L += lines(f"""s_cmp_eq_u32 s{S_W}, 0
s_cselect_b32 s{S_T0}, 0, {OOB}
v_mul_u32_u24 v{t+2}, 0xd80, v{t+2}
v_and_b32 v{t+3}, 7, v{t}
v_lshl_add_u32 v{t+2}, v{t+3}, 1, v{t+2}
v_and_b32 v{t+3}, 1, v{t}
v_lshl_add_u32 v{t+2}, v{t+3}, 30, v{t+2}
v_or_b32 v{t+2}, s{S_T0}, v{t+2}
v_min_u32 v{V_SIG}, 1, v{t}
v_lshlrev_b32 v{V_SIG}, 30, v{V_SIG}
v_or_b32 v{V_SIG}, s{S_T0}, v{V_SIG}
v_mov_b32 v{V_ONE}, 1
s_lshl_b32 s{S_T0}, s{S_J1}, 4
s_add_u32 s{S_T0}, s{S_T0}, {WS_H}""")
    L.append(Wait(regs=[v(g, 4), v(u, 4)]))
    L += interleave(*[[f"v_add_f32 v{x}, v{x}, v{x+1}", f"v_add_f32 v{x+2}, v{x+2}, v{x+3}", f"v_add_f32 v{x}, v{x}, v{x+2}"]
                      + bf16_round(f"v{x}", f"v{x}") for x in (g, u)])
    L += silu(f"v{g}", f"v{g}", f"v{g+1}") + bf16_round(f"v{g}", f"v{g}")
    L += [f"v_mul_f32 v{g}, v{g}, v{u}",
          f"v_mov_b32_dpp v{g+1}, v{g} quad_perm:[1,0,3,2] row_mask:0xf bank_mask:0xf",
          f"v_cvt_pk_bf16_f32 v{g}, v{g}, v{g+1}",
          Ins(f"buffer_store_dword v{g}, v{t+2}, {WS}, s{S_T0} offen sc1", "h")]
    return L + srd_list(AUX2, P_DBG, 256)


def signal():
    return [f"buffer_atomic_add v{V_ONE}, v{V_SIG}, s[{AUX2}:{AUX2+3}], 0 offen", f"v_mov_b32 v{V_SIG}, {OOB}"]


def poll():
    return f"buffer_load_dword v{V_POLL}, off, s[{AUX2}:{AUX2+3}], 0 sc1"


def pair_rows(t):
    return lane_of(t) + lines(f"""v_and_b32 v{t+1}, 1, v{t}
v_lshrrev_b32 v{t}, 1, v{t}
v_mul_u32_u24 v{t}, 0x500, v{t}
v_lshl_add_u32 v{t}, v{t+1}, 4, v{t}""")


def wof_loads(t):
    L = srd_list(AUX1, P_WO, W_BYTES) + pair_rows(t) + lines(f"""s_lshr_b32 s{S_T0}, s2, 1
s_mul_i32 s{S_T0}, s{S_T0}, 40960
s_and_b32 s{S_T1}, s2, 1
s_lshl_b32 s{S_T1}, s{S_T1}, 2
s_add_u32 s{S_T1}, s{S_T1}, s{S_W}
s_mul_i32 s{S_T1}, s{S_T1}, 160
s_add_u32 s{S_T0}, s{S_T0}, s{S_T1}""")
    for i in range(5):
        L += lds_dma(f"s_add_u32 m0, s{S_STG}, {i*992}",
                     [f"buffer_load_dwordx4 v{t}, s[{AUX1}:{AUX1+3}], s{S_T0} offen offset:{32*i} lds"], "wo")
    return L


def wof_stores(t):
    L = lane_of(t) + lines(f"""v_bfe_u32 v{t+1}, v{t}, 2, 4
v_and_b32 v{t}, 3, v{t}
v_lshlrev_b32 v{t}, 3, v{t}
v_lshl_add_u32 v{t}, v{t+1}, 5, v{t}
v_add_u32 v{t}, s{S_STG}, v{t}
s_and_b32 s{S_T1}, s2, 1
s_lshl_b32 s{S_T1}, s{S_T1}, 2
s_add_u32 s{S_T1}, s{S_T1}, s{S_W}
s_mul_i32 s{S_T1}, s{S_T1}, 655360
s_lshr_b32 s{S_T0}, s2, 1
s_mul_i32 s{S_T0}, s{S_T0}, 5120
s_add_u32 s{S_T0}, s{S_T0}, s{S_T1}
s_add_u32 s{S_T0}, s{S_T0}, {WS_WOF}
s_add_u32 s{S_T1}, s{S_T0}, 4096""")
    L.append(Wait(tags="wo"))
    L += [f"ds_read_b64_tr_b16 {a(A_A+4*i+2*h,2)}, v{t} offset:{1024*i+512*h}" for i in range(5) for h in range(2)]
    L.append(Wait(regs=[a(A_A, 20)]))
    L += [f"buffer_store_dwordx4 {a(A_A+4*i,4)}, v{XO}, {WS}, s{S_T0 if i < 4 else S_T1} offen offset:{1024*(i%4)}"
          for i in range(5)]
    return L


S_KS, S_CB = 98, 99


S_H = 101


def ffn2_weights(t):
    L = srd_list(AUX1, P_WD, WF_BYTES) + lines(f"""s_lshr_b32 s{S_T0}, s2, 3
s_min_u32 s{S_T0}, s{S_T0}, 29
s_and_b32 s{S_T1}, s2, 7
s_mul_i32 s{S_T1}, s{S_T1}, 30
s_add_u32 s{S_T0}, s{S_T0}, s{S_T1}
s_mul_i32 s{S_KS}, s{S_T0}, 1639
s_lshr_b32 s{S_KS}, s{S_KS}, 16
s_mul_i32 s{S_CB}, s{S_KS}, 40
s_sub_u32 s{S_CB}, s{S_T0}, s{S_CB}
s_min_u32 s{S_T0}, s{S_W}, 2
s_mul_i32 s{S_T1}, s{S_KS}, 3
s_add_u32 s{S_T1}, s{S_T1}, s{S_T0}
s_mul_i32 s{S_T0}, s{S_T1}, {96*1280}
s_lshl_b32 s100, s{S_CB}, 5
s_add_u32 s{S_T0}, s{S_T0}, s100
s_mul_i32 s{S_H}, s{S_T1}, 192
s_add_u32 s{S_H}, s{S_H}, {WS_H}""") + pair_rows(t)
    for k in range(3):
        L += lds_dma(f"s_add_u32 m0, s{S_STG}, {1024*k}",
                     [f"buffer_load_dwordx4 v{t}, s[{AUX1}:{AUX1+3}], s{S_T0} offen lds"], "f2w")
        L.append(f"s_add_u32 s{S_T0}, s{S_T0}, {32*1280}")
    return L


def ffn2_hidden(t):
    L = lane_of(t) + lines(f"""v_and_b32 v{t+1}, 7, v{t}
v_mul_u32_u24 v{t+1}, 0xd80, v{t+1}
v_lshrrev_b32 v{t}, 4, v{t}
v_lshl_add_u32 v{t+1}, v{t}, 4, v{t+1}""")
    L += [f"buffer_load_dwordx4 {a(A_B+4*k,4)}, v{t+1}, {WS}, s{S_H} offen offset:{64*k} sc1" for k in range(3)]
    return L


def ffn2_mfma(t, acc):
    L = lane_of(t) + natural_rows(t + 1, t, t + 2, 5) + lines(f"""v_and_b32 v{t+2}, 3, v{t}
v_lshl_add_u32 v{t+1}, v{t+2}, 3, v{t+1}
v_add_u32 v{t+1}, s{S_STG}, v{t+1}""")
    L.append(Wait(regs=[a(A_B, 12)], tags="f2w"))
    L += [f"ds_read_b64_tr_b16 {a(A_A+4*k+2*h,2)}, v{t+1} offset:{1024*k+128*h}" for k in range(3) for h in range(2)]
    L.append(Wait(regs=[a(A_A, 12)]))
    L += [f"{MF} {v(acc,4)}, {a(A_A+4*k,4)}, {a(A_B+4*k,4)}, {v(acc,4) if k else 0}" for k in range(3)]
    return L + part_write(acc, t)


def ffn2_finish(t, p):
    L = [f"v_add_u32 v{t}, {LDS_PART}, v{XO}"]
    L += [f"ds_read_b128 {v(p+4*w,4)}, v{t} offset:{1024*w}" for w in range(3)]
    L += lane_of(t) + lines(f"""s_cmp_eq_u32 s{S_W}, 0
s_cselect_b32 s{S_T0}, 0, {OOB}
v_and_b32 v{t+1}, 7, v{t}
v_mul_u32_u24 v{t+1}, 0xa00, v{t+1}
v_lshrrev_b32 v{t+2}, 4, v{t}
v_lshl_add_u32 v{t+1}, v{t+2}, 4, v{t+1}
v_bfe_u32 v{t+2}, v{t}, 3, 1
v_lshl_add_u32 v{t+1}, v{t+2}, 30, v{t+1}
v_or_b32 v{t+1}, s{S_T0}, v{t+1}
s_mul_i32 s{S_T0}, s{S_KS}, 20480
s_lshl_b32 s{S_T1}, s{S_CB}, 6
s_add_u32 s{S_T0}, s{S_T0}, s{S_T1}
s_add_u32 s{S_T0}, s{S_T0}, {WS_YP}""")
    L += [f"v_add_f32 v{p+j}, v{p+j}, v{p+4*w+j}" for w in (1, 2) for j in range(4)]
    L.append(f"buffer_store_dwordx4 {v(p,4)}, v{t+1}, {WS}, s{S_T0} offen")
    return L
```

```python
import os
import sys
sys.path.insert(0, os.path.dirname(os.path.abspath(__file__)))
import k_prep, k_attn, k_out

ROOT = os.path.dirname(os.path.dirname(os.path.abspath(__file__)))
STEM = "recurrent_scan__mha_block_cached__moe_arch_mod__prompt"


def render(kernels):
    ref = open(os.path.join(ROOT, STEM + ".s.ref")).read().split("\n")
    head = [l for l in ref if l.startswith("; Kernarg") or l.startswith(";   offset")]
    out = head + [f"; @launch kernel={k['name']} grid=({k['grid']},1,1) block=({k['block']},1,1) lds={k['lds']}" for k in kernels]
    out += ['.amdgcn_target "amdgcn-amd-amdhsa--gfx950"', ".text"]
    seen = []
    for k in kernels:
        if k["name"] not in seen:
            seen.append(k["name"])
            out.append(k["text"])
    out.append('.section .rodata,"a"')
    done = []
    for k in kernels:
        if k["name"] not in done:
            done.append(k["name"])
            out += [".p2align 6", k["desc"]]
    return "\n".join(out) + "\n"


if __name__ == "__main__":
    import common
    if "--stamps" in sys.argv:
        sys.argv.remove("--stamps")
        common.STAMPS = True
    for x in list(sys.argv[1:]):
        if "=" in x:
            k, val = x.split("=", 1)
            common.OPT[k] = val
            sys.argv.remove(x)
    ks = [k_prep.build(), k_attn.build(), k_out.build()]
    path = sys.argv[1] if len(sys.argv) > 1 else os.path.join(ROOT, STEM + ".s")
    open(path, "w").write(render(ks))
    print("wrote", path)
```

```python
import re

TRANS = ("v_exp_f32", "v_log_f32", "v_rcp_f32", "v_rsq_f32", "v_sqrt_f32", "v_sin_f32", "v_cos_f32")
RMW_DST = ("v_fmac_f32", "v_dot2c_f32_bf16", "v_writelane_b32", "s_addk_i32", "s_mulk_i32", "v_pk_fmac_f16")
_REG = re.compile(r"^(-?)(?:abs\()?\|?([vas])(?:(\d+)|\[(\d+):(\d+)\])\|?\)?$")


def r(cls, start, n=1):
    return f"{cls}{start}" if n == 1 else f"{cls}[{start}:{start + n - 1}]"


def v(start, n=1):
    return r("v", start, n)


def a(start, n=1):
    return r("a", start, n)


def s(start, n=1):
    return r("s", start, n)


def regs_of(tok):
    tok = tok.strip()
    if tok in ("vcc", "exec"):
        return [tok]
    if tok in ("vcc_lo", "vcc_hi"):
        return ["vcc"]
    if tok in ("exec_lo", "exec_hi"):
        return ["exec"]
    if tok == "m0":
        return ["m0"]
    m = _REG.match(tok)
    if not m:
        return []
    cls = m.group(2)
    if m.group(3) is not None:
        return [(cls, int(m.group(3)))]
    return [(cls, i) for i in range(int(m.group(4)), int(m.group(5)) + 1)]


class Ins:
    def __init__(self, text, tag=None):
        self.text = text.strip()
        self.tag = tag
        self.passes = 0
        self.srcc = []
        self.srcab = []
        self._parse()

    def __repr__(self):
        return self.text

    def _parse(self):
        t = self.text
        self.rd, self.wr = [], []
        if t.endswith(":"):
            self.kind, self.op = "label", t
            return
        if t.startswith(".") or t.startswith(";"):
            self.kind, self.op = "dir", t
            return
        parts = t.split(None, 1)
        op = self.op = parts[0]
        rest = parts[1] if len(parts) > 1 else ""
        toks = [x.strip() for x in re.split(r",(?![^\[\(]*[\]\)])", rest)] if rest else []
        mods = []
        if toks:
            last = toks[-1].split()
            toks[-1] = last[0] if last else ""
            mods = last[1:]
        self.mods = mods
        R = [regs_of(x) for x in toks]
        flat = lambda L: [x for y in L for x in y]
        base = re.sub(r"_(e32|e64|dpp|sdwa)$", "", op)
        if op.startswith("v_mfma"):
            self.kind = "mfma"
            self.passes = 8 if "32x32" in op else 4
            self.wr = R[0]
            self.srcab = R[1] + R[2]
            self.srcc = R[3]
            self.rd = self.srcab + self.srcc
        elif op.startswith("v_"):
            self.kind = "valu"
            if base in TRANS:
                self.kind = "trans"
            dpp = op.endswith("_dpp") or any(m.startswith(("row_", "quad_perm", "wave_")) for m in mods)
            self.dpp = dpp
            if base.startswith("v_cmpx"):
                self.wr, self.rd = R[0] + ["exec"], flat(R[1:])
            elif base.startswith("v_permlane") and "swap" in base:
                self.wr = self.rd = R[0] + R[1]
            elif base in ("v_add_co_u32", "v_sub_co_u32", "v_addc_co_u32", "v_subb_co_u32", "v_mad_u64_u32"):
                self.wr, self.rd = R[0] + R[1], flat(R[2:])
            elif base == "v_nop":
                pass
            else:
                self.wr, self.rd = R[0], flat(R[1:])
                if base in RMW_DST or dpp or "op_sel" in t and "v_pk_" not in t or op.endswith("_sdwa"):
                    self.rd = self.rd + R[0]
        elif op.startswith("ds_"):
            if op.startswith(("ds_read", "ds_bpermute", "ds_permute", "ds_swizzle")) or "_rtn" in op:
                self.kind, self.wr, self.rd = "ds_rd", R[0], flat(R[1:])
            else:
                self.kind, self.rd = "ds_wr", flat(R)
        elif op.startswith(("buffer_", "global_")):
            if op in ("buffer_wbl2", "buffer_inv"):
                self.kind = "vm_misc"
            elif "lds" in mods or "_lds_" in op:
                self.kind, self.rd = "dma", flat(R) + ["m0"]
            elif "_load" in op:
                self.kind, self.wr, self.rd = "vm_ld", R[0], flat(R[1:])
            elif "_atomic" in op:
                self.kind, self.rd = "vm_st", flat(R)
                if "sc0" in mods:
                    self.kind = "vm_ld"
                    self.wr = R[0]
            else:
                self.kind, self.rd = "vm_st", flat(R)
                self.wide = op.endswith(("x3", "x4"))
                self.data = R[0] if op.startswith("buffer_") else R[1]
        elif op.startswith(("s_load", "s_buffer_load", "s_memtime", "s_memrealtime")):
            self.kind, self.wr, self.rd = "smem", R[0], flat(R[1:])
        elif op == "s_waitcnt":
            self.kind = "wait"
            m = re.search(r"vmcnt\((\d+)\)", t)
            self.vm = int(m.group(1)) if m else None
            m = re.search(r"lgkmcnt\((\d+)\)", t)
            self.lg = int(m.group(1)) if m else None
        elif op == "s_nop":
            self.kind = "nop"
            self.n = int(toks[0], 0) + 1
        elif op == "s_barrier":
            self.kind = "barrier"
        elif op.startswith(("s_branch", "s_cbranch", "s_endpgm", "s_setprio", "s_sleep")):
            self.kind = "ctl"
            if "vcc" in op:
                self.rd = ["vcc"]
            if "exec" in op:
                self.rd = ["exec"]
            if "scc" in op:
                self.rd = ["scc"]
        elif op.startswith("s_cmp") or op.startswith("s_bitcmp"):
            self.kind, self.wr, self.rd = "salu", ["scc"], flat(R)
        elif op.startswith("s_"):
            self.kind, self.wr, self.rd = "salu", R[0] + ["scc"], flat(R[1:])
            if "saveexec" in op:
                self.wr, self.rd = self.wr + ["exec"], self.rd + ["exec"]
            if base in RMW_DST:
                self.rd = self.rd + R[0]
            if op.startswith(("s_mov", "s_getpc", "s_mul_i32", "s_mul_hi", "s_getreg")):
                self.wr = R[0]
            if op.startswith(("s_addc", "s_subb", "s_cselect")):
                self.rd = self.rd + ["scc"]
        else:
            raise ValueError("unknown instruction: " + t)

    @property
    def is_vec(self):
        return self.kind in ("valu", "trans")

    @property
    def cost(self):
        if self.kind == "trans" or self.kind in ("dma", "vm_ld", "vm_st"):
            return 8
        if self.kind in ("valu", "ds_rd", "ds_wr"):
            return 4
        return 0


class Wait(Ins):
    def __init__(self, regs=(), tags=(), ds_all=False):
        self.text = "s_waitcnt ?"
        self.kind = "pwait"
        self.op = "pwait"
        self.rd, self.wr = [], []
        self.tag = None
        self.regs = set()
        for x in ([regs] if isinstance(regs, str) else regs):
            self.regs.update(regs_of(x))
        self.tags = set([tags] if isinstance(tags, str) else tags)
        self.ds_all = ds_all
        self.vm = None
        self.lg = None


class Block:
    def __init__(self, name):
        self.name = name
        self.ins = []

    def __call__(self, text, tag=None):
        if isinstance(text, Ins):
            self.ins.append(text)
            return text
        out = None
        for line in text.split("\n"):
            if line.strip():
                out = Ins(line, tag)
                self.ins.append(out)
        return out

    def extend(self, items):
        for x in items:
            self(x)


VM_KINDS = ("dma", "vm_ld", "vm_st")
DS_KINDS = ("ds_rd", "ds_wr")


def _merge(old, new):
    if new is None:
        return old
    return new if old is None else min(old, new)


def resolve_waits(paths, auto=True):
    for _ in range(50):
        changed = False
        for path in paths:
            vmq, dsq, smem = [], [], set()
            for blk in path:
                i = 0
                while i < len(blk.ins):
                    ins = blk.ins[i]
                    if ins.kind == "pwait":
                        nv = _need(vmq, ins.regs, ins.tags)
                        nl = 0 if ins.ds_all and dsq else _need(dsq, ins.regs, ins.tags)
                        if smem & ins.regs or (nl is not None and smem):
                            nl = 0
                        nv = None if nv is None else min(nv, 63)
                        nl = None if nl is None else min(nl, 15)
                        mv, ml = _merge(ins.vm, nv), _merge(ins.lg, nl)
                        if (mv, ml) != (ins.vm, ins.lg):
                            ins.vm, ins.lg = mv, ml
                            changed = True
                    if ins.kind in ("wait", "pwait"):
                        if ins.vm is not None:
                            del vmq[: max(0, len(vmq) - ins.vm)]
                        if ins.lg is not None:
                            del dsq[: max(0, len(dsq) - ins.lg)]
                            if ins.lg == 0:
                                smem = set()
                    else:
                        touched = set(ins.rd) | set(ins.wr)
                        pend = [x for q in (vmq, dsq) for o in q for x in o.wr if x in touched]
                        pend += [x for x in smem if x in touched]
                        if pend:
                            if not auto:
                                raise RuntimeError(f"uncovered load result {pend[:4]} at {blk.name}[{i}] {ins.text}")
                            w = Wait()
                            w.regs = set(pend)
                            w.auto = True
                            blk.ins.insert(i, w)
                            changed = True
                            continue
                        if ins.kind in VM_KINDS and len(vmq) >= 62:
                            if not auto:
                                raise RuntimeError(f"more than 62 vector memory operations in flight at {ins.text}")
                            blk.ins.insert(i, Ins("s_waitcnt vmcnt(60)"))
                            changed = True
                            continue
                        if ins.kind in VM_KINDS:
                            vmq.append(ins)
                        elif ins.kind in DS_KINDS:
                            dsq.append(ins)
                        elif ins.kind == "smem":
                            smem.update(ins.wr)
                    i += 1
        if not changed:
            break
    else:
        raise RuntimeError("wait resolution did not converge")


def _need(queue, regs, tags):
    last = -1
    for k, o in enumerate(queue):
        if (o.tag is not None and o.tag in tags) or any(x in regs for x in o.wr):
            last = k
    return None if last < 0 else len(queue) - 1 - last


def _states(ins):
    if ins.kind in ("label", "dir"):
        return 0
    if ins.kind == "pwait":
        return 1 if (ins.vm is not None or ins.lg is not None) else 0
    return ins.n if ins.kind == "nop" else 1


XDL_VALU = {4: 8, 8: 12}
XDL_OVERLAP_C = {4: 6, 8: 10}
XDL_WAR_C = {4: 3, 8: 7}


def required_gap(p, c):
    need = 0
    pw, prd = set(p.wr), set(p.rd)
    cr, cw = set(c.rd), set(c.wr)
    vec_c = c.kind in ("valu", "trans")
    mem_c = c.kind in VM_KINDS or c.kind in DS_KINDS
    if p.kind == "mfma":
        if c.kind == "mfma":
            if pw & set(c.srcab):
                need = max(need, XDL_VALU[p.passes])
            if pw & set(c.srcc) and (c.srcc != p.wr or c.passes != p.passes):
                need = max(need, XDL_OVERLAP_C[p.passes])
            if pw & cw and c.srcc != p.wr:
                need = max(need, XDL_OVERLAP_C[p.passes])
        elif (vec_c or mem_c) and pw & (cr | cw):
            need = max(need, XDL_VALU[p.passes])
        if (vec_c or c.kind in ("ds_rd", "vm_ld")) and set(p.srcc) & cw:
            need = max(need, XDL_WAR_C[p.passes])
    if p.kind in ("valu", "trans"):
        vw = {x for x in pw if isinstance(x, tuple) and x[0] in "va"}
        sw = {x for x in pw if x == "vcc" or (isinstance(x, tuple) and x[0] == "s")}
        if c.kind == "mfma" and vw & cr:
            need = max(need, 2)
        if c.kind == "mfma" and "exec" in pw:
            need = max(need, 4)
        if vec_c:
            if p.kind == "trans" and vw & cr and c.kind != "trans":
                need = max(need, 1)
            if p.kind == "trans" and vw & cr and c.kind == "trans":
                need = max(need, 1)
            if (c.op.startswith("v_permlane") or getattr(c, "dpp", False)) and vw & cr:
                need = max(need, 2)
            if c.op.startswith(("v_readlane", "v_readfirstlane")) and vw & cr:
                need = max(need, 1)
            if sw & cr:
                need = max(need, 4 if c.op.startswith(("v_readlane", "v_writelane", "v_div_fmas")) else 2)
            if "exec" in pw:
                if getattr(c, "dpp", False):
                    need = max(need, 5)
                elif c.op.startswith(("v_readlane", "v_readfirstlane", "v_writelane", "v_permlane")):
                    need = max(need, 4)
            if ("op_sel" in p.text and "v_pk_" not in p.text or p.op.endswith("_sdwa")) and vw & (cr | cw):
                need = max(need, 1)
        if c.kind in VM_KINDS and sw & cr:
            need = max(need, 5)
        if c.kind in ("salu", "ctl", "smem") and sw & cr:
            need = max(need, 1)
    if p.kind == "salu" and "m0" in pw and (c.kind == "dma" or "m0" in cr):
        need = max(need, 1)
    if p.kind == "salu" and "exec" in pw and vec_c and getattr(c, "dpp", False):
        need = max(need, 1)
    if p.kind == "vm_st" and getattr(p, "wide", False) and set(p.data) & cw:
        need = max(need, 2)
    return need


def pad_hazards(paths, auto=True):
    added = 0
    for _ in range(200):
        fix = None
        for path in paths:
            window = []
            for blk in path:
                for i, ins in enumerate(blk.ins):
                    if ins.kind not in ("label", "dir", "pwait", "wait", "nop", "barrier"):
                        dist = 0
                        for p in reversed(window):
                            need = required_gap(p, ins)
                            if need > dist:
                                fix = (blk, i, need - dist, p, ins)
                                break
                            dist += _states(p)
                            if dist >= 12:
                                break
                        if fix:
                            break
                    window.append(ins)
                    if len(window) > 40:
                        del window[0]
                if fix:
                    break
            if fix:
                break
        if not fix:
            return added
        blk, i, n, p, ins = fix
        if not auto:
            raise RuntimeError(f"hazard in {blk.name}[{i}]: {p.text} -> {ins.text} short by {n}")
        blk.ins.insert(i, Ins(f"s_nop {n - 1}"))
        blk.ins[i].why = f"{p.op}->{ins.op}"
        added += 1
    raise RuntimeError("hazard padding did not converge")


def _pad_many(paths):
    total = 0
    while True:
        try:
            return total + pad_hazards(paths)
        except RuntimeError as e:
            if "converge" not in str(e):
                raise
            total += 200


def finalize(blocks, paths):
    resolve_waits(paths)
    _pad_many(paths)
    resolve_waits(paths, auto=False)
    for path in paths:
        check_m0(path)
    for blk in blocks:
        check_skips(blk)
    out = []
    for blk in blocks:
        for ins in blk.ins:
            if ins.kind == "pwait":
                parts = []
                if ins.vm is not None:
                    parts.append(f"vmcnt({ins.vm})")
                if ins.lg is not None:
                    parts.append(f"lgkmcnt({ins.lg})")
                if parts:
                    out.append("  s_waitcnt " + " ".join(parts))
            elif ins.kind == "label":
                out.append(ins.text)
            else:
                out.append("  " + ins.text)
    return "\n".join(out)


class Fill:
    def __init__(self, ins, lo=0, hi=None, tag=None):
        self.ins = ins if isinstance(ins, Ins) else Ins(ins, tag)
        self.lo, self.hi = lo, hi
        self.gap = 8 if self.ins.kind == "pwait" else 0


def _gap_ok(history, ins):
    dist = 0
    for p in reversed(history):
        if required_gap(p, ins) > dist:
            return False
        dist += 1 if p.kind == "pwait" else _states(p)
        if dist >= 12:
            break
    return True


MAX_FREE = 2


def weave(blk, spine, vec, non, budget=8, flush=True, exact=False, extra=None, extra2=None, over=0):
    vec, non = list(vec), list(non)
    extras = [x for x in (extra, extra2) if x is not None]
    last_ds = [-99] * len(extras)
    for k, m in enumerate(spine):
        for q in [non, vec] + extras:
            last = max((j for j, f in enumerate(q) if f.hi is not None and f.hi <= k), default=-1)
            for f in q[: last + 1]:
                blk(f.ins)
            del q[: last + 1]
        blk(m)
        left = budget
        take = ([], [])
        for q, out in zip((non, vec), take):
            while q and q[0].lo <= k and q[0].ins.cost <= left + (over if q[0].ins.kind == "dma" else 0):
                left -= min(q[0].ins.cost, left)
                out.append(q.pop(0).ins)
            if exact and q and q[0].lo <= k:
                raise RuntimeError(f"slot {k} over budget at {q[0].ins.text}")
        blk.extend(take[0])
        free = MAX_FREE - sum(x.cost == 0 for x in take[0])
        for n, q in enumerate(extras):
            while q and q[0].lo <= k and not q[0].ins.is_vec and q[0].ins.kind != "mfma":
                x = q[0].ins
                if x.cost == 0 and x.kind != "label" and not x.text.startswith("s_addc"):
                    if free <= 0:
                        break
                    free -= 1
                if min(x.cost, 4) > left or not _gap_ok(blk.ins[-30:], x) or k < last_ds[n] + q[0].gap:
                    break
                if x.kind in DS_KINDS:
                    last_ds[n] = k
                left -= min(x.cost, left)
                blk(q.pop(0).ins)
        blk.extend(take[1])
        for q in extras:
            while q and q[0].lo <= k and q[0].ins.is_vec:
                x = q[0].ins
                if min(x.cost, 4) > left or not _gap_ok(blk.ins[-30:], x):
                    break
                left -= min(x.cost, left)
                blk(q.pop(0).ins)
        for q in extras:
            while q and q[0].lo <= k and q[0].ins.kind == "mfma" and _gap_ok(blk.ins[-30:], q[0].ins):
                blk(q.pop(0).ins)
    if flush:
        for f in non + vec:
            blk(f.ins)
        return [], []
    return vec, non


def check_skips(blk):
    for i, ins in enumerate(blk.ins):
        if ins.kind == "ctl" and ins.op.startswith("s_cbranch"):
            target = ins.text.split()[-1] + ":"
            rest = [x.text for x in blk.ins[i + 1:]]
            if target in rest:
                skipped = blk.ins[i + 1:i + 1 + rest.index(target)]
                if any(x.kind in VM_KINDS + DS_KINDS for x in skipped):
                    raise RuntimeError(f"{ins.text} in {blk.name} skips memory operations")


def check_m0(path):
    cur = None
    for blk in path:
        for ins in blk.ins:
            if "m0" in ins.wr:
                cur = ins
            if ins.kind == "dma" and getattr(ins, "m0", cur) is not cur:
                raise RuntimeError(f"M0 clobbered before {ins.text} in {blk.name}")


def lds_dma(m0_text, loads, tag):
    m = Ins(m0_text)
    out = [m]
    for x in loads:
        i = Ins(x, tag)
        i.m0 = m
        out.append(i)
    return out


def descriptor(name, vgpr, sgpr, accum):
    return f""".amdhsa_kernel {name}
  .amdhsa_next_free_vgpr {vgpr}
  .amdhsa_next_free_sgpr {sgpr}
  .amdhsa_accum_offset {accum}
  .amdhsa_group_segment_fixed_size 0
  .amdhsa_kernarg_size 104
  .amdhsa_user_sgpr_count 2
  .amdhsa_user_sgpr_kernarg_segment_ptr 1
  .amdhsa_system_sgpr_workgroup_id_x 1
.end_amdhsa_kernel"""


def entry(name):
    return f".globl {name}\n.p2align 8\n.type {name},@function\n{name}:"
```

```python
from asmlib import *

KA_X, KA_K, KA_V, KA_WQ, KA_WO = 0, 8, 16, 24, 32
KA_WR, KA_WG, KA_WU, KA_WD, KA_OUT, KA_DBG, KA_WS = 48, 56, 64, 72, 80, 88, 96

WS_XF = 0x0
WS_RK = 0x280000
WS_TOP = 0x282000
WS_H = 0x283000
WS_YP = 0x290000
WS_FLG = 0x2b0000
FLG_HW, FLG_Y = WS_FLG, WS_FLG + 256
FLG_O = WS_FLG + 0xc000
FLG_B, FLG_E = WS_FLG + 0x2000, WS_FLG + 0x3000
FLG_X = WS_FLG + 0x4000
WS_WOF = 0x300000
WS_OF = 0x800000
WS_XP = 0x1800000
WS_END = 0x1c00000

X_BYTES = 2048 * 640 * 2
KV_HEAD_BYTES = 2048 * 128 * 2
W_BYTES = 640 * 4096 * 2
WF_BYTES = 640 * 1728 * 2

LOG2E = 1.4426950408889634

SPIN_LIMIT = 0x8000

OPT = {}


def opt(name, default=None):
    import common
    return common.OPT.get(name, default)


def fbits(x):
    import struct
    return "0x%08x" % struct.unpack("<I", struct.pack("<f", x))[0]


def srd(b, d, ptr, size, off=None):
    if off is None:
        b(f"s_mov_b32 s{d}, s{ptr}\ns_mov_b32 s{d+1}, s{ptr+1}")
    else:
        b(f"s_add_u32 s{d}, s{ptr}, {off}\ns_addc_u32 s{d+1}, s{ptr+1}, 0")
    b(f"s_mov_b32 s{d+2}, {size}\ns_mov_b32 s{d+3}, 0x20000")


def bf16_round(dst, src):
    return [f"v_cvt_pk_bf16_f32 {dst}, {src}, {src}", f"v_lshlrev_b32 {dst}, 16, {dst}"]


def row_reduce(op, reg):
    return [f"{op}_dpp {reg}, {reg}, {reg} row_ror:{n} row_mask:0xf bank_mask:0xf" for n in (8, 4, 2, 1)]


def cross_rows(op, reg, tmp):
    return [f"v_mov_b32 {tmp}, {reg}", f"v_permlane16_swap_b32 {reg}, {tmp}", f"{op} {reg}, {reg}, {tmp}",
            f"v_mov_b32 {tmp}, {reg}", f"v_permlane32_swap_b32 {reg}, {tmp}", f"{op} {reg}, {reg}, {tmp}"]


def interleave(*lists):
    out = []
    n = max(len(x) for x in lists)
    for i in range(n):
        for x in lists:
            if i < len(x):
                out.append(x[i])
    return out


def top8(keys, nkeys, tmp, whole_wave, keep):
    prev, win, acc = tmp, tmp + 1, tmp + 2
    L = [f"v_mov_b32 v{prev}, -1"]
    for e in range(8):
        for i in range(0, nkeys, 2):
            t0, t1 = acc + 1 + (i % 4), acc + 2 + (i % 4)
            L.append(f"v_sub_u32 v{t0}, v{prev}, v{keys+i}")
            L.append(f"v_sub_u32 v{t1}, v{prev}, v{keys+i+1}")
            L.append(f"v_min_u32 v{acc}, v{t0}, v{t1}" if i == 0 else f"v_min3_u32 v{acc}, v{acc}, v{t0}, v{t1}")
        L += row_reduce("v_min_u32", f"v{acc}")
        if whole_wave:
            L += cross_rows("v_min_u32", f"v{acc}", f"v{acc+1}")
        L += [f"v_sub_u32 v{win}, v{prev}, v{acc}", f"v_add_u32 v{prev}, -1, v{win}"]
        if e < 7:
            L.append(f"v_sub_u32 v{acc+1}, v{prev}, v{keys}")
        L += keep(e, win)
    out, skip = [], None
    for i, x in enumerate(L):
        if x == skip:
            skip = None
            continue
        if i and L[i - 1].startswith("v_add_u32") and x.startswith("v_sub_u32"):
            skip = x
        out.append(x)
    return out


def silu(dst, src, t):
    return [f"v_mul_f32 {t}, {fbits(-LOG2E)}, {src}", f"v_exp_f32 {t}, {t}", f"v_add_f32 {t}, 1.0, {t}",
            f"v_rcp_f32 {t}, {t}", f"v_mul_f32 {dst}, {src}, {t}"]


def touch(b, text):
    ins = b(text, tag="touch")
    ins.wr = []
    return ins


def code_prefetch_shared(b, s_pc, vtmp, vjunk, label, end_label, lines):
    b(f"s_getpc_b64 s[{s_pc}:{s_pc+1}]")
    b(f"{label}_pc:")
    b(f"s_add_u32 s{s_pc}, s{s_pc}, {label}-{label}_pc\ns_addc_u32 s{s_pc+1}, s{s_pc+1}, 0")
    b(f"s_lshr_b32 s{s_pc+2}, s2, 3\nv_min_u32 v{vtmp}, {lines-1}, v0\nv_lshlrev_b32 v{vtmp}, 5, v{vtmp}")
    b(f"v_add_u32 v{vtmp}, s{s_pc+2}, v{vtmp}\nv_lshlrev_b32 v{vtmp}, 7, v{vtmp}\nv_min_u32 v{vtmp}, {end_label}-{label}-4, v{vtmp}")
    touch(b, f"global_load_dword v{vjunk}, v{vtmp}, s[{s_pc}:{s_pc+1}]")


WS_STAMP = 0x2000000
STAMPS = False


def stamp(b, i, real=False, group="main"):
    if _stamps_on() and (real or i == 0 or group == opt("stampset", "main")):
        real = real or (opt("rt") and i > 0)
        b(f"{'s_memrealtime' if real else 's_memtime'} s[{64+2*i}:{65+2*i}]")


def stamp_flush(b, n, kernel_slot, s_ws, s_wave, vtmp):
    if not _stamps_on():
        return
    b("s_waitcnt lgkmcnt(0)\ns_mov_b64 exec, -1")
    b(f"v_mov_b32 v{vtmp}, 0")
    for i in range(n):
        b(f"v_writelane_b32 v{vtmp}, s{64+2*i}, {i}")
    b(f"s_load_dwordx2 s[{s_ws}:{s_ws+1}], s[0:1], {KA_WS}\ns_waitcnt lgkmcnt(0)")
    srd(b, 60, s_ws, 0x40000, WS_STAMP + kernel_slot * 0x40000)
    b(f"s_lshl_b32 s59, s2, 2\ns_add_u32 s59, s59, s{s_wave}\ns_lshl_b32 s59, s59, 6")
    b(f"v_mbcnt_lo_u32_b32 v{vtmp+1}, -1, 0\nv_mbcnt_hi_u32_b32 v{vtmp+1}, -1, v{vtmp+1}\nv_lshlrev_b32 v{vtmp+1}, 2, v{vtmp+1}")
    b("s_mov_b64 exec, 0xffff")
    b(f"buffer_store_dword v{vtmp}, v{vtmp+1}, s[60:63], s59 offen")


def _stamps_on():
    import common
    return common.STAMPS


def pack_muls(items):
    import re
    out, i = [], 0
    pat = re.compile(r"v_mul_f32 v(\d+), (?:(s\d+), v\1|v\1, (v\d+))$")
    while i < len(items):
        m = pat.match(items[i].text)
        n = pat.match(items[i + 1].text) if m and i + 1 < len(items) else None
        if n and int(m.group(1)) % 2 == 0 and int(n.group(1)) == int(m.group(1)) + 1 and m.groups()[1:] == n.groups()[1:]:
            d, f = int(m.group(1)), m.group(2) or m.group(3)
            k = int(f[1:])
            assert k % 2 == 0
            out.append(Ins(f"v_pk_mul_f32 {v(d,2)}, {v(d,2)}, {f[0]}[{k}:{k+1}] op_sel_hi:[1,0]"))
            i += 2
        else:
            out.append(items[i])
            i += 1
    return out
```

```python
import common
from common import *
import k_side as side
import k_front as front
import k_tail

NAME = "recurrent_scan__mha_block_cached__moe_arch_mod__prompt_kernel"
MF = "v_mfma_f32_16x16x32_bf16"

Q0, NEG0, L0 = 128, 192, 208
KA, VA, WA = 212, 216, 224
DK, DV, DW = 232, 236, 238
XO, OO, T = 242, 244, 245
KF, VF, LT, ONES = 128, 160, 192, 208
SRD_K, SRD_V, SRD_W, SRD_WS = 12, 16, 20, 24
S_W, S_M0, S_KV, S_X, S_WQ, S_CNT, S_O, S_C = 3, 28, 29, 30, 31, 32, 33, 34
VBASE = 65536
FLAG_LDS = side.LDS_FLAG
SCALE = LOG2E / 128 ** 0.5
SUM_LIMIT = 2.0 ** 40
BAR = 114
DMA_SLOTS = {"a": (2, 4, 6, 9, 13, 25, 29, 41), "b": (2, 6, 9, 13, 25, 29, 41, 45), "c": (2, 9, 13, 25, 29, 41, 45, 61),
             "d": (2, 13, 29, 45, 53, 61, 69, 77), "e": (4, 13, 25, 41, 53, 69, 85, 101),
             "f": (4, 9, 13, 25, 29, 41, 45, 53), "g": (2, 6, 13, 25, 29, 41, 45, 53),
             "h": (2, 9, 13, 25, 29, 41, 45, 53), "i": (9, 13, 25, 29, 41, 45, 49, 53), "j": (4, 13, 25, 29, 41, 45, 49, 53)}
SIDE_DMA = 45


def G(buf, ks2, qb):
    return buf * 64 + (ks2 * 4 + qb) * 8


def S(buf, kb, qb):
    return G(buf, kb >> 1, qb) + (kb & 1) * 4


def Qf(qb, ks):
    return Q0 + (qb * 4 + ks) * 4


def tile(db, qb):
    return (db * 4 + qb) * 4


def Xf(stage, ks2, qb):
    return a((stage % 4) * 32 + (ks2 * 4 + qb) * 4, 4)


def Kf(kb, ks):
    return a(KF + (kb & 1) * 16 + ks * 4, 4)


def Vf(db, ks2, h=None):
    base = VF + (db % 4) * 8 + ks2 * 4
    return a(base, 4) if h is None else a(base + 2 * h, 2)


def k_reads(t, kb):
    return [f"ds_read_b128 {Kf(kb, ks)}, v{KA+ks} offset:{(t % 4) * 16384 + kb * 4096}" for ks in range(4)]


def k_wait(kb):
    return Wait(regs=[Kf(kb, ks) for ks in range(4)])


def v_reads(t, db):
    return [f"ds_read_b64_tr_b16 {Vf(db, ks2, h)}, v{VA+db} offset:{(t % 4) * 16384 + ks2 * 8192 + h * 4096}"
            for ks2 in range(2) for h in range(2)]


W_SLOT = (6, 7, 2, 3, 1, 0, 4, 5, 6, 7)
WA_LOW = 148


def w_reads(s, db):
    slot = W_SLOT[s]
    return [f"ds_read_b64_tr_b16 {Vf(db, ks2, h)}, v{(WA if slot >= 4 else WA_LOW)+db} offset:{(slot % 4) * 16384 + ks2 * 8192 + h * 1024}"
            for ks2 in range(2) for h in range(2)]


def w_dma(st, regs=DW, shift=0):
    return lds_dma(f"s_add_u32 m0, s{S_M0}, {W_SLOT[st] * 16384 + shift}",
                   [f"buffer_load_dwordx4 v{regs+j}, s[{SRD_W}:{SRD_W+3}], s{S_WQ} offen offset:{1024*j} lds"
                    for j in range(4)], f"W{st}")


def v_wait(db):
    return Wait(regs=[Vf(db, 0), Vf(db, 1)])


def dma(kind, slot, soff):
    srd_, base, voff = {"K": (SRD_K, 0, lambda j: DK + j), "V": (SRD_V, VBASE, lambda j: DV + (j & 1))}[kind]
    tag = kind + str(slot)
    return lds_dma(f"s_add_u32 m0, s{S_M0}, {base + slot * 16384}",
                   [f"buffer_load_dwordx4 v{voff(j)}, s[{srd_}:{srd_+3}], s{soff} offen offset:{1024*j} lds"
                    for j in range(4)], tag)


def x_loads(stage):
    return [f"buffer_load_dwordx4 {Xf(stage, ks2, qb)}, v{XO+ks2}, s[{SRD_WS}:{SRD_WS+3}], s{S_X} offen offset:{1024*qb} sc1"
            for ks2 in range(2) for qb in range(4)] + [f"s_add_u32 s{S_X}, s{S_X}, 8192"]


def qk_spine(buf, cfun):
    L = []
    for kb in range(4):
        for qb in range(4):
            for step in range(4):
                ks = step if qb % 2 == 0 else 3 - step
                d = v(S(buf, kb, qb), 4)
                L.append(f"{MF} {d}, {Kf(kb, ks)}, {v(Qf(qb, ks), 4)}, {d if step else cfun(kb, qb)}")
    return L


def pair_spine(dst, bfun, zero):
    L = []
    for db in range(8):
        for qb in range(4):
            for step in range(2):
                ks2 = step if qb % 2 == 0 else 1 - step
                d = dst(db, qb)
                L.append(f"{MF} {d}, {Vf(db, ks2)}, {bfun(ks2, qb)}, {0 if zero and not step else d}")
    return L


def pv_spine(buf, zero=False):
    return pair_spine(lambda db, qb: a(tile(db, qb), 4), lambda ks2, qb: v(G(buf, ks2, qb), 4), zero)


def sum_spine(buf, zero=False):
    L = []
    for qb in range(4):
        d = a(LT + 4 * qb, 4)
        L += [f"{MF} {d}, {a(ONES, 4)}, {v(G(buf, ks2, qb), 4)}, {0 if zero and not ks2 else d}" for ks2 in range(2)]
    return L


def soft_tile(buf, i, sums=False):
    kb, qb = i >> 2, i & 3
    x = S(buf, kb, qb)
    p = G(buf, kb >> 1, qb) + (kb & 1) * 2
    ex = lambda k: f"v_exp_f32 v{x+k}, v{x+k}"
    ad = lambda k: f"v_add_f32 v{L0+qb}, v{L0+qb}, v{x+k}"
    cv = lambda k: f"v_cvt_pk_bf16_f32 v{p+k}, v{x+2*k}, v{x+2*k+1}"
    if sums:
        return [(0, ex(0)), (2, ex(1)), (3, ad(0)), (4, ex(2)), (5, ad(1)), (5, cv(0)), (6, ex(3)), (7, ad(2)),
                (9, ad(3)), (9, cv(1))]
    return [(0, ex(0)), (2, ex(1)), (3, cv(0)), (4, ex(2)), (6, ex(3)), (7, cv(1))]


def iteration(b, t, first=False, tail_salu=(), extra=None, wait_tags=(), extra2=None, v_dma=None, k_dma=None):
    nb, cb = (t + 1) % 2, t % 2
    spine = qk_spine(nb, lambda kb, qb: v(NEG0 + 4 * qb, 4)) + sum_spine(cb, first) + pv_spine(cb, first)
    vec = [Fill(x, lo=8 * (i + 1) + o) for i in range(16) for o, x in soft_tile(nb, i)]
    non = []
    put = lambda slot, x: non.append((slot, len(non), Fill(x, lo=slot)))
    for kb in range(3):
        for k, x in enumerate(k_reads(t + 1, kb + 1)):
            put(16 * kb + 1 + 2 * k, x)
        put(16 * kb + 14, k_wait(kb + 1))
    d = (v_dma or dma("V", (t + 2) % 4, S_KV)) + [Ins(f"s_add_u32 s{S_KV}, s{S_KV}, 16384")] + (k_dma or dma("K", (t + 3) % 4, S_KV))
    for db in range(8):
        for k, y in enumerate(v_reads(t, db)):
            put(int(opt("vstart", 49)) + 8 * db + 2 * k, y)
        put(70 + 8 * db, v_wait(db))
    x = DMA_SLOTS[opt("dmaslots", "g")]
    for slot, y in zip((x[0] - 2, *x[:4], x[3] + 1, x[4] - 1, *x[4:]), d):
        put(slot, y)
    put(BAR - 2, Wait(tags=[f"K{(t + 2) % 4}", f"V{(t + 1) % 4}", *wait_tags]))
    put(BAR, "s_barrier")
    for slot, y in zip((BAR + 1, BAR + 3, BAR + 5, BAR + 7), k_reads(t + 2, 0) if t < 30 else []):
        put(slot, y)
    for slot, x in zip((130, 132), tail_salu):
        put(slot, x)
    put(134, k_wait(0))
    left = weave(b, spine, vec, [x[2] for x in sorted(non, key=lambda z: z[:2])], flush=False, exact=True, extra=extra, extra2=extra2, over=4)
    assert left == ([], []), left
    if t >= 27:
        assert not extra and not extra2, (t, extra, extra2)


def late_code():
    V = 252
    x = Ins(f"global_load_dword v255, v{V}, s[8:9]", "touch")
    x.wr = []
    return ["s_getpc_b64 s[8:9]", "attn_late_pc:", "s_add_u32 s8, s8, attn_h_ready-attn_late_pc", "s_addc_u32 s9, s9, 0",
            "s_lshr_b32 s39, s2, 3", f"v_lshrrev_b32 v{V}, 4, v{XO}", f"v_min_u32 v{V}, 11, v{V}", f"v_lshlrev_b32 v{V}, 5, v{V}",
            f"v_add_u32 v{V}, s39, v{V}", f"v_lshlrev_b32 v{V}, 7, v{V}", f"v_min_u32 v{V}, attn_end-attn_h_ready-4, v{V}"], x


def q_final(ks, qb):
    A, B, q = tile(2 * ks, qb), tile(2 * ks + 1, qb), Qf(qb, ks)
    L = [f"v_mul_f32 v{x+j}, s{S_C}, v{x+j}" for x in (A, B) for j in range(4)]
    L += [f"v_cvt_pk_bf16_f32 v{q+j}, v{x}, v{x+1}" for j, x in enumerate((A, A + 2, B, B + 2))]
    return L, [f"v_permlane16_swap_b32 v{q}, v{q+2}", f"v_permlane16_swap_b32 v{q+1}, v{q+3}"]


def o_final(s, qb, tmp, rcp):
    src = [tile(2 * s, qb) + j for j in range(4)] + [tile(2 * s + 1, qb) + j for j in range(4)]
    L = [f"v_accvgpr_read_b32 v{tmp+j}, a{x}" for j, x in enumerate(src)]
    L += [f"v_mul_f32 v{tmp+j}, v{tmp+j}, v{rcp}" for j in range(8)]
    L += [f"v_cvt_pk_bf16_f32 v{tmp+j}, v{tmp+2*j}, v{tmp+2*j+1}" for j in range(4)]
    off = (s >> 1) * 8192 + qb * 2048 + (s & 1) * 1024
    st = f"buffer_store_dwordx4 {v(tmp,4)}, v{OO}, s[{SRD_WS}:{SRD_WS+3}], s{40 + off // 4096} offen offset:{off % 4096} sc1"
    return L, Ins(st, "o")


def row_sums(from_tiles):
    L = [f"v_accvgpr_read_b32 v{L0+qb}, a{LT+4*qb}" for qb in range(4)] if from_tiles else []
    L += interleave(*[cross_rows("v_add_f32", f"v{L0+qb}", f"v{T+qb}") for qb in range(4)])
    L += [f"v_rcp_f32 v{NEG0+4*qb}, v{L0+qb}" for qb in range(4)]
    return L


LANE, R, C, GG, t0, t1 = T, T + 1, T + 2, T + 3, T + 4, T + 5


def wq_source_offsets(b):
    b(f"v_lshrrev_b32 v{GG}, 4, v{LANE}\nv_and_b32 v{C}, 15, v{LANE}")
    b(f"s_lshl_b32 s38, s{S_W}, 17\nv_lshlrev_b32 v{t0}, 13, v{GG}\nv_add_u32 v{t0}, s38, v{t0}")
    for j in range(4):
        b(f"v_or_b32 v{t1}, {(j >> 1) << 2}, v{GG}\nv_lshlrev_b32 v{t1}, 1, v{t1}\nv_xor_b32 v{t1}, v{t1}, v{C}")
        b(f"v_lshl_add_u32 v{DW+j}, v{t1}, 4, v{t0}")
        if j:
            b(f"v_add_u32 v{DW+j}, {j * (32768 - 1024)}, v{DW+j}")


def wq_descriptor(b, ptr):
    b("s_lshl_b32 s38, s36, 8")
    srd(b, SRD_W, ptr, f"{W_BYTES}", "s38")
    b(f"s_sub_u32 s{SRD_W+2}, s{SRD_W+2}, s38")


def wq_read_addresses(b):
    b(f"v_bfe_u32 v{R}, v{LANE}, 2, 2\nv_and_b32 v{C}, 3, v{LANE}\nv_lshlrev_b32 v{C}, 3, v{C}\nv_add_u32 v{C}, {VBASE}, v{C}")
    b(f"v_lshl_add_u32 v{t0}, v{GG}, 3, v{R}\nv_and_b32 v{t1}, 1, v{GG}\nv_lshl_add_u32 v{t1}, v{t1}, 2, v{R}")
    b(f"v_lshl_add_u32 v{t1}, v{t1}, 5, v{C}\nv_lshl_add_u32 v{WA}, v{t0}, 8, v{t1}")
    for db in range(1, 8):
        b(f"v_xor_b32 v{WA+db}, {32*db}, v{WA}")


def setup(blk):
    b = blk["head"]
    b("s_cmp_ge_u32 s2, 256\ns_cbranch_scc1 attn_end")
    stamp(b, 0)
    stamp(b, 10, real=True)
    P_WR = 48
    b(f"s_load_dwordx2 s[{side.P_X}:{side.P_X+1}], s[0:1], {KA_X}\ns_load_dwordx2 s[{P_WR}:{P_WR+1}], s[0:1], {KA_WR}")
    b(f"s_load_dwordx4 s[4:7], s[0:1], {KA_K}\ns_load_dwordx2 s[8:9], s[0:1], {KA_WQ}\ns_load_dwordx2 s[10:11], s[0:1], {KA_WS}")
    b(f"s_load_dwordx2 s[{side.P_WO}:{side.P_WO+1}], s[0:1], {KA_WO}\ns_load_dwordx2 s[{side.P_WG}:{side.P_WG+1}], s[0:1], {KA_WG}")
    b(f"s_load_dwordx4 s[{side.P_WU}:{side.P_WU+3}], s[0:1], {KA_WU}")
    b(f"s_load_dwordx2 s[{side.P_OUT}:{side.P_OUT+1}], s[0:1], {KA_OUT}")
    JUNK = 255
    b(f"v_lshrrev_b32 v{t0}, 6, v0\nv_and_b32 v0, 63, v0\nv_mov_b32 v{LANE}, v0")
    b(f"v_readfirstlane_b32 s{S_W}, v{t0}")
    hb = int(opt("hbits", 2))
    b(f"s_and_b32 s36, s2, {2**(5-hb)-1}\ns_lshl_b32 s36, s36, {hb}\ns_lshr_b32 s37, s2, {8-hb}\ns_add_u32 s36, s36, s37")
    b(f"s_bfe_u32 s37, s2, {((5-hb) << 16) | 3}")
    if hb > 2:
        b(f"s_bfe_u32 s38, s2, {((hb-2) << 16) | (5-hb)}\ns_lshl_b32 s38, s38, {5-hb}\ns_add_u32 s37, s37, s38")
    b(f"s_lshl_b32 s37, s37, 2\ns_add_u32 s37, s37, s{S_W}")
    b(f"s_lshl_b32 s{S_M0}, s{S_W}, 12")
    wq_source_offsets(b)
    b("s_waitcnt lgkmcnt(0)")
    stamp(b, 1, group="front")
    front.launch_number(b, 10)
    srd(b, SRD_WS, 10, WS_END)
    wq_descriptor(b, 8)
    b(f"s_cmp_ge_u32 s{S_W}, 2\ns_cbranch_scc1 front_fetch")

    def both_quarters(b, st):
        b(f"s_mov_b32 s{S_WQ}, {st * 0x80000}")
        b.extend(w_dma(st, 16, -8192) + w_dma(st))

    b = blk["ln"]
    front.layernorm(b, 36, 37, S_W, side.P_X, P_WR)
    b("s_branch front_join")
    b = blk["fetch"]
    b("front_fetch:")
    code_prefetch_shared(b, 98, t0, JUNK, "attn_hot", "attn_end", 18)
    b("attn_hot:")
    for j in range(4):
        b(f"v_subrev_u32 v{16+j}, 0x40000, v{DW+j}")
    n1 = int(opt("fetch1", 1))
    for st in range(n1):
        both_quarters(b, st)
    b = blk["join"]
    b("front_join:\ns_waitcnt lgkmcnt(0)\ns_barrier")
    stamp(b, 1)
    stamp(b, 4, group="front")
    front.signal(b, S_W, 36, 37)
    b(f"s_cmp_lt_u32 s{S_W}, 2\ns_cbranch_scc1 front_addr")
    b = blk["fetch2"]
    for st in range(n1, int(opt("wpre", 4))):
        both_quarters(b, st)
    b = blk["setup"]
    b("front_addr:")
    b(f"s_mov_b32 s{S_WQ}, {int(opt('wpre', 4)) * 0x80000}")
    b(f"v_lshlrev_b32 v{XO}, 4, v{LANE}\nv_add_u32 v{XO+1}, 0x1000, v{XO}\ns_mul_i32 s{S_X}, s37, 81920")
    b("s_lshl_b32 s38, s36, 19")
    srd(b, SRD_K, 4, KV_HEAD_BYTES, "s38")
    srd(b, SRD_V, 6, KV_HEAD_BYTES, "s38")
    b(f"v_lshlrev_b32 v{t0}, 8, v{GG}\nv_add_u32 v{t0}, s{S_M0}, v{t0}")
    for j in range(4):
        b(f"v_add_u32 v{t1}, {4*j}, v{GG}\nv_xor_b32 v{t1}, v{t1}, v{C}\nv_lshl_add_u32 v{DK+j}, v{t1}, 4, v{t0}")
    for j in range(2):
        b(f"v_add_u32 v{t1}, {4*j}, v{GG}\nv_lshlrev_b32 v{t1}, 1, v{t1}\nv_xor_b32 v{t1}, v{t1}, v{C}")
        b(f"v_lshl_add_u32 v{DV+j}, v{t1}, 4, v{t0}")
    b(f"v_lshrrev_b32 v{t0}, 1, v{GG}\nv_and_b32 v{t1}, 1, v{GG}\nv_lshl_or_b32 v{t0}, v{t1}, 1, v{t0}")
    b(f"v_xor_b32 v{t0}, v{t0}, v{C}\nv_lshlrev_b32 v{t0}, 4, v{t0}\nv_lshl_add_u32 v{KA}, v{C}, 8, v{t0}")
    for ks in range(1, 4):
        b(f"v_xor_b32 v{KA+ks}, {64*ks}, v{KA}")
    wq_read_addresses(b)
    b(f"v_lshl_add_u32 v{t0}, v{GG}, 2, v{R}\nv_and_b32 v{t1}, 7, v{t0}\nv_lshl_add_u32 v{t1}, v{t1}, 5, v{C}")
    b(f"v_lshl_add_u32 v{VA}, v{t0}, 8, v{t1}")
    for db in range(1, 8):
        b(f"v_xor_b32 v{VA+db}, {32*db}, v{VA}")
    for db in range(8):
        b(f"v_subrev_u32 v{WA_LOW+db}, {VBASE}, v{WA+db}")
    b(f"s_lshr_b32 s38, s2, 3\ns_min_u32 s38, s38, 26\ns_and_b32 s39, s2, 7\ns_mul_i32 s39, s39, 27\ns_add_u32 s{side.S_J1}, s38, s39")
    b(f"s_mul_i32 s{side.S_STG}, s{S_W}, 6144\ns_add_u32 s{side.S_STG}, s{side.S_STG}, {side.LDS_STG}")
    b(f"v_mov_b32 v{OO}, v{XO}")
    b(f"s_lshl_b32 s40, s37, 19\ns_lshl_b32 s38, s36, 14\ns_add_u32 s40, s40, s38\ns_add_u32 s40, s40, {WS_OF}")
    for k in range(1, 4):
        b(f"s_add_u32 s{40+k}, s40, {4096*k}")
    b(f"s_mov_b32 s{S_C}, {fbits(SCALE)}\ns_mov_b32 s{S_KV}, 0")
    b(f"v_and_b32 v{t0}, 15, v{LANE}\nv_cmp_eq_u32 vcc, 0, v{t0}\nv_mov_b32 v{t0}, 0x3f803f80")
    b(f"v_cndmask_b32 v{t0}, 0, v{t0}, vcc")
    for j in range(4):
        b(f"v_accvgpr_write_b32 a{ONES+j}, v{t0}")
    front.wait_block(blk["fpoll"], "front_go", S_W)


def q_projection(b, spin, b2):
    b("front_go:")
    stamp(b, 2)
    stamp(b, 5, group="front")
    n0 = int(opt("x0", 2))
    for st in range(n0):
        b.extend(x_loads(st))
    b.extend(front.poll_all(Q0 + 8, Q0 + 12))
    b("s_barrier")
    b.extend(w_reads(0, 0) + w_reads(0, 1))
    b(Wait(regs=[Xf(0, k, q) for k in range(2) for q in range(4)] + [Vf(0, 0), Vf(0, 1)]))
    stamp(b, 6, group="front")
    vec = []
    KEYS, KT = Q0, Q0 + 8
    w_next = int(opt("wpre", 4))
    extra = []
    for st in range(10):
        if st == 2:
            front.wait_all(b, spin, "front_keys", KT, KT + 4)
            b = b2
            b("front_keys:")
            b.extend(side.key_loads(KEYS))
            extra += [Fill(x) for x in front.next_launch_number(KT, KT + 1, S_W)]
        if st == 4:
            extra += [Fill(x) for x in side.route_level1(KEYS, KT)]
        if st == 6:
            print("routing level 1 left at stage 6:", len(extra))
            for f in extra:
                f.hi = 45
            extra += [Fill(x, lo=46) for x in side.route_level2(KEYS, KT)]
        if st == 7:
            for f in extra:
                f.lo = 0
        if st == 9:
            print("routing level 2 left at stage 9:", len(extra))
            for f in extra:
                f.hi = 12
        spine = pair_spine(lambda db, qb: v(tile(db, qb), 4), lambda ks2, qb: Xf(st, ks2, qb), st == 0)
        non = []
        put = lambda slot, x, hi=None: non.append((slot, len(non), Fill(x, lo=slot, hi=hi)))
        for db in range(6):
            for k, x in enumerate(w_reads(st, db + 2)):
                put(8 * db + 2 * k, x)
        for db in range(7):
            put(8 * db + 7, v_wait(db + 1), hi=8 * db + 8)
        step = lambda: Ins(f"s_add_u32 s{S_KV}, s{S_KV}, 16384")
        spread8, spread4 = (1, 9, 17, 25, 33, 41, 49, 57, 57), (4, 5, 21, 37, 53, 53)
        if st == 0:
            late = [x for k in range(n0, 4) for x in x_loads(k)]
            for k, x in enumerate(late):
                put(1 + 60 * k // len(late) // 2 * 2, x)
        if 1 <= st <= 6:
            for slot, x in zip(spread8, x_loads(st + 3)):
                put(slot, x)
        if st >= 1 and w_next < 10 and st + 6 >= w_next:
            for slot, x in zip(spread4, w_dma(w_next) + [Ins(f"s_add_u32 s{S_WQ}, s{S_WQ}, 0x80000")]):
                put(slot, x)
            w_next += 1
        if st == 7:
            for slot, x in zip(spread4, dma("K", 0, S_KV)):
                put(slot, x)
        if st == 8:
            for slot, x in zip(spread4, dma("V", 0, S_KV) + [step()]):
                put(slot, x)
        if st == 9:
            for slot, x in zip((0, 1, 5, 9, 11), dma("K", 1, S_KV)):
                put(slot, x)
        put(43, Wait(tags=f"W{st + 1}" if st < 9 else "K0"))
        put(45, "s_barrier")
        nxt = w_reads(st + 1, 0) + w_reads(st + 1, 1) if st < 9 else k_reads(0, 0)
        for slot, x in zip((48, 50, 52, 54, 56, 58, 60, 62), nxt):
            put(slot, x)
        if st < 9:
            put(63, Wait(regs=[Xf(st + 1, k, q) for k in range(2) for q in range(4)] + [Vf(0, 0), Vf(0, 1)]))
        else:
            put(63, k_wait(0))
            for ks in range(4):
                for qb in range(4):
                    L, sw = q_final(ks, qb)
                    lo = 16 * ks + 8 + 2 * qb + 1 + 4
                    vec += [Fill(x, lo=lo) for x in L[:12]]
                    vec += pend if ks or qb else []
                    pend = [Fill(x, lo=lo) for x in sw]
            vec += pend
        vec, rest = weave(b, spine, vec, [x[2] for x in sorted(non, key=lambda z: z[:2])], flush=False, extra=extra)
        b.extend([f.ins for f in rest])
        assert st or not extra
        if st < 9:
            stamp(b, st + 1, group="qproj")
    return vec


def first_scores(b, carry, extra):
    b.extend(pack_muls([f.ins for f in carry]) if opt("pk", "1") == "1" else [f.ins for f in carry])
    spine = qk_spine(0, lambda kb, qb: 0 if kb < 2 else v(NEG0 + 4 * qb, 4))
    mx = []
    for qb in range(4):
        x, m = S(0, 0, qb), NEG0 + 4 * qb
        mx.append([f"v_max3_f32 v{m}, v{x}, v{x+1}, v{x+2}", f"v_max_f32 v{m}, v{m}, v{x+3}"]
                  + cross_rows("v_max_f32", f"v{m}", f"v{T+qb}")
                  + [f"v_sub_f32 v{m+j}, 0, v{m}" for j in (1, 2, 3, 0)])
    vec = [Fill(x, lo=11, hi=31) for x in interleave(mx[0], mx[1])]
    vec += [Fill(x, lo=19, hi=31) for x in interleave(mx[2], mx[3])]
    held = []
    for i in range(16):
        kb, qb = i >> 2, i & 3
        lo = 4 * i + 7
        if kb < 2:
            x = S(0, kb, qb)
            vec += [Fill(f"v_add_f32 v{x+j}, v{NEG0+4*qb}, v{x+j}", lo=lo) for j in range(4)]
        st = [x for o, x in soft_tile(0, i)]
        vec += [Fill(st[j], lo=lo) for j in (0, 1, 3, 2, 4)] + held
        held = [Fill(st[5], lo=lo)]
    vec += held
    non = []
    d = dma("V", 1, S_KV) + [Ins(f"s_add_u32 s{S_KV}, s{S_KV}, 16384")] + dma("K", 2, S_KV)
    non += [(slot, Fill(x, lo=slot)) for slot, x in zip((0, 1, 3, 5, 7, 8, 8, 9, 10, 24, 26), d)]
    for kb in range(3):
        non += [(16 * kb + 2 * k, Fill(x, lo=16 * kb + 2 * k)) for k, x in enumerate(k_reads(0, kb + 1))]
        non.append((16 * kb + 15, Fill(k_wait(kb + 1), lo=16 * kb + 15, hi=16 * kb + 16)))
    non = [x[1] for x in sorted(non, key=lambda z: z[0])]
    non += [Fill(Wait(tags=["K1", "V0"]), lo=48), Fill("s_barrier", lo=49)]
    non += [Fill(x, lo=50 + 2 * k) for k, x in enumerate(k_reads(1, 0))]
    non.append(Fill(k_wait(0), lo=63))
    for f in extra:
        f.lo = 40 if f.ins.kind == "dma" or "m0" in f.ins.wr else 0
    extra[-1].hi = 46
    weave(b, spine, vec, non, extra=extra)


def last_values(b):
    spine = sum_spine(1) + pv_spine(1)
    non, vec = [], []
    for db in range(6):
        non += [(9 + 8 * db + 2 * k, Fill(x, lo=9 + 8 * db + 2 * k)) for k, x in enumerate(v_reads(31, db + 2))]
    non += [(7 + 8 * db, Fill(v_wait(db), lo=7 + 8 * db, hi=8 + 8 * db)) for db in range(8)]
    non = [x[1] for x in sorted(non, key=lambda z: z[0])]
    chk = row_sums(True) + [
        f"v_add_f32 v{T+1}, v{L0}, v{L0+1}", f"v_add_f32 v{T+2}, v{L0+2}, v{L0+3}", f"v_add_f32 v{T+1}, v{T+1}, v{T+2}",
        f"v_lshrrev_b32 v{T+2}, 2, v{XO}", f"v_cmp_nlt_f32 vcc, v{T+1}, s48", f"v_add_u32 v{T+2}, s39, v{T+2}",
        f"v_add_u32 v{T+2}, {FLAG_LDS}, v{T+2}", f"v_cndmask_b32_e64 v{T}, 0, 1, vcc"]
    b(f"s_mov_b32 s48, {fbits(SUM_LIMIT)}\ns_lshl_b32 s39, s{S_W}, 8")
    vec += [Fill(x, lo=11) for x in chk]
    early = k_tail.a_dma(4) + [k_tail.a_load(f) for f in range(*early_split())]
    extra = [Fill(x, lo=2 * k, hi=30) for k, x in enumerate(early)]
    n = 0
    for s_ in range(4):
        for qb in range(4):
            L, st = o_final(s_, qb, 8 * (n % 8), NEG0 + 4 * qb)
            lo = 8 + 16 * s_ + 8 + 2 * qb + 1 + 4
            vec += [Fill(x, lo=lo) for x in L] + [Fill(st, lo=lo)]
            n += 1
    vec, non = weave(b, spine, vec, non, extra=extra, flush=False)
    rest = [f.ins for f in non + vec]
    b.extend(pack_muls(rest) if opt("pk", "1") == "1" else rest)
    b(f"ds_write_b32 v{T+2}, v{T}")


SIG = 64


def early_split():
    n30, nlast = int(opt("n30", 12)), int(opt("nlast", 8))
    assert k_tail.F_LOOP + n30 + nlast <= k_tail.F_LAST
    return k_tail.F_LOOP + n30, k_tail.F_LOOP + n30 + nlast


def checked_loads():
    return range(early_split()[1], min(early_split()[1] + int(opt("pre1", 8)), k_tail.F_CHECK))


def range_check(b):
    b.extend([k_tail.a_load(f) for f in checked_loads()])
    b.extend(k_tail.signal_setup(SIG))
    b(f"v_add_u32 v{T+1}, {FLAG_LDS}, v{XO}")
    b(Wait(tags="o", ds_all=True))
    b("s_barrier")
    b(f"ds_read_b128 {v(SIG+4,4)}, v{T+1}")
    b(f"v_or3_b32 v{SIG+4}, v{SIG+4}, v{SIG+5}, v{SIG+6}\nv_or_b32 v{SIG+4}, v{SIG+4}, v{SIG+7}")
    b(f"v_cmp_ne_u32 vcc, 0, v{SIG+4}")
    b("s_cbranch_vccnz attn_redo")
    stamp(b, 2, group="tail")


def fallback(pre0, qloop, pre, loop, post):
    M0_ = T + 4
    b = pre0
    b(f"attn_redo:\ns_load_dwordx2 s[48:49], s[0:1], {KA_WQ}\ns_waitcnt vmcnt(0) lgkmcnt(0)")
    wq_descriptor(b, 48)
    b(f"v_lshrrev_b32 v{LANE}, 4, v{XO}\nv_add_u32 v{XO+1}, 0x1000, v{XO}\ns_mul_i32 s{S_X}, s37, 81920\ns_mov_b32 s{S_WQ}, 0")
    wq_source_offsets(b)
    wq_read_addresses(b)
    for i in range(128):
        b(f"v_mov_b32 v{i}, 0")
    b = qloop
    b("attn_requery:\ns_barrier")
    b.extend(w_dma(1) + x_loads(0))
    b("s_waitcnt vmcnt(0)\ns_barrier")
    spine = pair_spine(lambda db, qb: v(tile(db, qb), 4), lambda ks2, qb: Xf(0, ks2, qb), False)
    for db in range(8):
        b.extend(w_reads(1, db))
        b.extend(spine[8 * db:8 * db + 8])
    b(f"s_add_u32 s{S_WQ}, s{S_WQ}, 0x80000\ns_cmp_lt_u32 s{S_WQ}, {10 * 0x80000}\ns_cbranch_scc1 attn_requery")
    b = pre
    for ks in range(4):
        for qb in range(4):
            L, sw = q_final(ks, qb)
            b.extend(L + sw)
    for i in range(128):
        b(f"v_accvgpr_write_b32 a{i}, 0")
    for qb in range(4):
        b(f"v_mov_b32 v{L0+qb}, 0\nv_mov_b32 v{M0_+qb}, 0xff800000")
    b(f"s_mov_b32 s{S_KV}, 0")
    b = loop
    b("attn_slow:\ns_barrier")
    b.extend(dma("K", 3, S_KV) + dma("V", 3, S_KV))
    b("s_waitcnt vmcnt(0)\ns_barrier")
    spine = qk_spine(0, lambda kb, qb: 0)
    for kb in range(4):
        b.extend(k_reads(3, kb))
        b.extend(spine[16 * kb:16 * kb + 16])
    for qb in range(4):
        m, al, t = NEG0 + 4 * qb, NEG0 + 4 * qb + 1, T
        xs = [S(0, kb, qb) + j for kb in range(4) for j in range(4)]
        b(f"v_mov_b32 v{m}, v{M0_+qb}")
        for k in range(0, 16, 2):
            b(f"v_max3_f32 v{m}, v{m}, v{xs[k]}, v{xs[k+1]}")
        b.extend(cross_rows("v_max_f32", f"v{m}", f"v{t}"))
        b(f"v_sub_f32 v{al}, v{M0_+qb}, v{m}\nv_exp_f32 v{al}, v{al}\nv_mov_b32 v{M0_+qb}, v{m}")
        b(f"v_mul_f32 v{L0+qb}, v{L0+qb}, v{al}")
        for x in xs:
            b(f"v_sub_f32 v{x}, v{x}, v{m}")
        for kb in range(4):
            b.extend([x for _, x in soft_tile(0, 4 * kb + qb, sums=True)])
        for db in range(8):
            o = tile(db, qb)
            b.extend([f"v_accvgpr_read_b32 v{64+j}, a{o+j}" for j in range(4)])
            b.extend([f"v_mul_f32 v{64+j}, v{64+j}, v{al}" for j in range(4)])
            b.extend([f"v_accvgpr_write_b32 a{o+j}, v{64+j}" for j in range(4)])
    spine = pv_spine(0)
    for db in range(8):
        b.extend(v_reads(3, db))
        b.extend(spine[8 * db:8 * db + 8])
    b(f"s_add_u32 s{S_KV}, s{S_KV}, 16384\ns_cmp_lt_u32 s{S_KV}, {KV_HEAD_BYTES}\ns_cbranch_scc1 attn_slow")
    b = post
    b.extend(row_sums(False))
    n = 0
    for s_ in range(4):
        for qb in range(4):
            L, st = o_final(s_, qb, 8 * (n % 8), NEG0 + 4 * qb)
            b.extend(L + [st])
            n += 1


def build():
    global SIDE_DMA, BAR
    BAR = int(opt("bar", 114))
    SIDE_DMA = DMA_SLOTS[opt("dmaslots", "g")][-1] + 4
    names = ("head", "ln", "fetch", "join", "fetch2", "setup", "fpoll", "qproj0", "kspin", "qproj", "first", "peel", "loop", "pre_last", "spin", "last", "go", "tspin", "tstart", "routed", "mid", "xspin", "tail", "fq0", "fq", "fpre", "floop", "fpost")
    blk = {n: Block(n) for n in names}
    setup(blk)
    f1 = [[]]
    for x in side.ffn1_loads(side.V_POLL - 1):
        f = Fill(x, lo=SIDE_DMA)
        if "m0" in f.ins.wr and any(g.ins.kind == "dma" for g in f1[-1]):
            f1.append([])
        f1[-1].append(f)
    carry = q_projection(blk["qproj0"], blk["kspin"], blk["qproj"])
    stamp(blk["qproj"], 3)
    first_scores(blk["first"], carry, f1[0])
    stamp(blk["first"], 4)
    stamp(blk["first"], 1, group="peel")
    E = WA
    f1m = [Fill(x) for x in side.ffn1_mfma(E, E + 4)]
    f1m[-1].hi = BAR
    fin = [Fill(x) for x in side.ffn1_finish(E, E + 4, DW)]
    piece = [Fill(x, lo=SIDE_DMA) for x in side.ffn2_piece()]
    gl = side.gather_loads()
    cut = [j for j, f in enumerate(fin) if f.ins.kind == "ds_rd"][0]
    for f in fin[cut:]:
        f.lo = BAR + 1
    for f in f1m:
        f.lo = SIDE_DMA if f.ins.kind == "mfma" else 0
    plan = f1[1:] + [[Fill(x) for x in side.loop_setup() + late_code()[0]], f1m + piece + fin]
    for t in range(5):
        plan[t] += [Fill(x, lo=120) for x in (gl[:3] if t == 0 else gl[2 * t + 1:2 * t + 3])]
    for t, extra in enumerate(plan):
        iteration(blk["peel"], t, first=(t == 0), extra=extra)
        blk["peel"].extend([f.ins for f in extra])
        stamp(blk["peel"], t + 2, group="peel")
        if extra:
            print("iteration", t, "left", len(extra))
    blk["peel"](f"s_mov_b32 s{S_CNT}, {side.TRIPS}")
    stamp(blk["peel"], 5)
    b = blk["loop"]
    b("attn_loop:")
    for t in range(7, 11):
        early, late = {7: (side.wof_load(0), []),
                       8: (side.wof_load(1), side.signal(S_CNT)),
                       9: (side.ffn2_piece(), side.wof_store(0, S_CNT)),
                       10: ([side.poll()], [])}[t]
        extra = [Fill(x, lo=SIDE_DMA - 1) for x in early] + [Fill(x, lo=BAR + 1 if t == 8 else 60) for x in late]
        if t == 7:
            extra += [Fill(late_code()[1], lo=100)]
        if t == 10:
            extra += [Fill(x, lo=60) for x in side.wof_store(1, S_CNT)]
        iteration(b, t, tail_salu=[f"s_sub_u32 s{S_CNT}, s{S_CNT}, 1", f"s_cmp_lg_u32 s{S_CNT}, 0"] if t == 10 else [],
                  extra=extra, wait_tags=["h", "wst"] if t == 8 else [])
        assert not extra
    b("s_cbranch_scc1 attn_loop")
    b = blk["pre_last"]
    b(f"v_readfirstlane_b32 s38, v{side.V_POLL}\ns_cmp_ge_u32 s38, 512\ns_cbranch_scc1 attn_h_ready")
    b = blk["spin"]
    b(f"s_mov_b32 s39, {SPIN_LIMIT}\nattn_spin:\ns_sleep 4\n{side.poll()}\ns_waitcnt vmcnt(0)")
    b(f"v_readfirstlane_b32 s38, v{side.V_POLL}\ns_cmp_ge_u32 s38, 512\ns_cbranch_scc1 attn_h_ready")
    b("s_sub_u32 s39, s39, 1\ns_cmp_lg_u32 s39, 0\ns_cbranch_scc1 attn_spin")
    b = blk["last"]
    b("attn_h_ready:")
    late = lambda L, k0=SIDE_DMA, step=min(8, (130 - SIDE_DMA) // 6): [Fill(x, lo=k0 + step * k) for k, x in enumerate(L)]
    iteration(b, 27, extra=[Fill(x) for x in side.ffn2_hidden(E)], extra2=[Fill(x) for x in k_tail.early_setup()])
    f2m = [Fill(x, lo=20) for x in side.ffn2_mfma(E, E + 4)]
    f2m[-1].hi = BAR
    iteration(b, 28, extra=f2m, extra2=late(k_tail.a_dma(0)))
    iteration(b, 29, extra=[Fill(x) for x in side.ffn2_finish(E, (E + 4, DW, L0))], k_dma=k_tail.a_dma(1),
              extra2=late([k_tail.a_load(f) for f in range(6)]))
    in30 = late([k_tail.a_load(f) for f in range(k_tail.F_LOOP, early_split()[0])], 72, 60 // (early_split()[0] - k_tail.F_LOOP))
    iteration(b, 30, extra=[Fill(x, lo=BAR + 1) for x in side.ffn2_signal()], wait_tags=["yp"],
              v_dma=k_tail.a_dma(3), k_dma=k_tail.a_dma(2),
              extra2=late([k_tail.a_load(f) for f in range(6, k_tail.F_LOOP)], step=3) + in30)
    stamp(b, 6)
    b.extend(v_reads(31, 0) + v_reads(31, 1))
    last_values(b)
    stamp(blk["last"], 7)
    stamp(blk["last"], 1, group="tail")
    range_check(blk["last"])
    fallback(blk["fq0"], blk["fq"], blk["fpre"], blk["floop"], blk["fpost"])
    b = blk["fpost"]
    b.extend(k_tail.early_offsets() + [k_tail.a_load(f) for f in range(k_tail.F_LOOP, checked_loads()[-1] + 1)])
    b.extend(k_tail.signal_setup(SIG))
    b("s_waitcnt vmcnt(0)\ns_barrier\ns_branch tail_go")
    k_tail.build(*(blk[n] for n in ("go", "tspin", "tstart", "routed", "mid", "xspin", "tail")), checked_loads()[-1] + 1, SIG)
    b = blk["tail"]
    if common.STAMPS:
        b("s_waitcnt vmcnt(0)")
    stamp(b, 8)
    stamp(b, 8, group="tail")
    stamp(b, 11, real=True)
    stamp_flush(b, 12, 0, 8, S_W, 126)
    b("attn_end:\ns_endpgm")
    p = lambda *n: [blk[x] for x in n]
    paths = [p("head", "fetch", "join", "fetch2", "setup", "fpoll", "qproj0", "kspin", "qproj"),
             p("head", "ln", "join", "setup", "fpoll", "qproj0", "qproj", "first", "peel", "loop", "loop", "pre_last", "last", "go", "tstart", "mid", "tail"),
             p("loop", "pre_last", "spin", "last", "fq0", "fq", "fq", "fpre", "floop", "floop", "fpost", "go", "tspin", "tstart", "routed", "mid", "xspin", "tail")]
    text = finalize(p(*names), paths)
    return dict(name=NAME, text=entry(NAME) + "\n" + text, desc=descriptor(NAME, 512, 102, 256),
                grid=256, block=256, lds=side.LDS_END, blocks=blk)
```

```python
from common import *

NAME = "diag_kernel"


def build(a_slot, a_idx, b_slot, b_idx, factor):
    b = Block("main")
    b("s_cmp_ge_u32 s2, 1\ns_cbranch_scc1 diag_end")
    b(f"s_load_dwordx2 s[4:5], s[0:1], {KA_WS}\ns_waitcnt lgkmcnt(0)")
    srd(b, 8, 4, 0x80000, WS_STAMP)
    b("v_lshlrev_b32 v1, 6, v0")
    for k in range(16):
        b(f"s_mov_b32 s12, {a_slot*0x40000 + k*4096}\nbuffer_load_dword v{10+k}, v1, s[8:11], s12 offen offset:{4*a_idx}")
        b(f"s_mov_b32 s12, {b_slot*0x40000 + k*4096}\nbuffer_load_dword v{30+k}, v1, s[8:11], s12 offen offset:{4*b_idx}")
    for k in range(1, 16):
        b(f"v_min_u32 v10, v10, v{10+k}\nv_max_u32 v30, v30, v{30+k}")
    b.extend(row_reduce("v_min_u32", "v10") + cross_rows("v_min_u32", "v10", "v2"))
    b.extend(row_reduce("v_max_u32", "v30") + cross_rows("v_max_u32", "v30", "v2"))
    b("v_readfirstlane_b32 s12, v10\nv_readfirstlane_b32 s13, v30")
    b(f"s_sub_u32 s13, s13, s12\ns_min_u32 s13, s13, 20000\ns_mul_i32 s13, s13, {factor}")
    b("s_memrealtime s[14:15]\ns_waitcnt lgkmcnt(0)")
    b("diag_loop:\ns_memrealtime s[16:17]\ns_waitcnt lgkmcnt(0)\ns_sub_u32 s16, s16, s14\ns_cmp_lt_u32 s16, s13\ns_cbranch_scc1 diag_loop")
    end = Block("end")
    end("diag_end:\ns_endpgm")
    return dict(name=NAME, text=entry(NAME) + "\n" + finalize([b, end], [[b, end]]), desc=descriptor(NAME, 64, 32, 64),
                grid=1, block=64, lds=0)
```

```python
from common import *
from common import _stamps_on
import k_side as side

WS = side.WS
SRD_A, SRD_B = 12, 16
S_TOK, S_A, S_B, S_MASK, S_CNT = 52, 53, 54, 56, 58


def layernorm(b, s_head, s_tile, s_wave, p_x, p_wr):
    XP, WP, XF = 8, 28, 48
    srd(b, SRD_A, p_x, X_BYTES)
    srd(b, SRD_B, p_wr, 1280)
    b(f"s_lshr_b32 s{S_TOK}, s{s_tile}, 2\ns_lshl_b32 s{S_TOK}, s{S_TOK}, 5\ns_add_u32 s{S_TOK}, s{S_TOK}, s{s_head}")
    b(f"s_lshl_b32 s{S_TOK}, s{S_TOK}, 1\ns_add_u32 s{S_TOK}, s{S_TOK}, s{s_wave}\ns_lshl_b32 s{S_TOK}, s{S_TOK}, 2")
    b(f"s_mul_i32 s{S_A}, s{S_TOK}, 1280")
    b("v_lshrrev_b32 v1, 4, v0\nv_and_b32 v2, 15, v0")
    b("v_lshlrev_b32 v3, 4, v2\nv_mul_u32_u24 v4, 0x500, v1\nv_add_u32 v4, v4, v3")
    for i in range(5):
        b(f"buffer_load_dwordx4 {v(XP+4*i,4)}, v4, s[{SRD_A}:{SRD_A+3}], s{S_A} offen offset:{256*i}")
    for i in range(5):
        b(f"buffer_load_dwordx4 {v(WP+4*i,4)}, v3, s[{SRD_B}:{SRD_B+3}], 0 offen offset:{256*i}")
    b(f"v_mov_b32 v7, 0\nv_lshlrev_b32 v6, 26, v0\ns_lshl_b32 s{S_A}, s2, 7\ns_add_u32 s{S_A}, s{S_A}, {FLG_X}")
    b(f"buffer_store_dword v7, v6, {WS}, s{S_A} offen sc1")
    b(f"v_lshlrev_b32 v6, 8, v0\nv_lshrrev_b32 v5, 5, v0\nv_lshl_add_u32 v6, v5, 26, v6\ns_cmp_eq_u32 s2, 0\ns_cselect_b32 s{S_A}, 0, {side.OOB}\nv_or_b32 v6, s{S_A}, v6")
    b(f"s_mov_b32 s{S_A}, {WS_FLG}\nbuffer_store_dword v7, v6, {WS}, s{S_A} offen sc1")
    b(f"v_lshlrev_b32 v6, 7, v0\ns_cmp_eq_u32 s2, 1\ns_cselect_b32 s{S_A}, 0, {side.OOB}\nv_or_b32 v6, s{S_A}, v6")
    b(f"s_mov_b32 s{S_A}, {FLG_O}\nbuffer_store_dword v7, v6, {WS}, s{S_A} offen sc1")
    b(f"s_lshr_b32 s{S_A}, s{S_TOK}, 6\ns_mul_i32 s{S_A}, s{S_A}, 81920")
    b(f"s_bfe_u32 s{S_B}, s{S_TOK}, 0x20004\ns_lshl_b32 s{S_B}, s{S_B}, 10\ns_add_u32 s{S_A}, s{S_A}, s{S_B}")
    b(f"s_and_b32 s{S_B}, s{S_TOK}, 15\ns_lshl_b32 s{S_B}, s{S_B}, 4\ns_add_u32 s{S_A}, s{S_A}, s{S_B}")
    b("v_lshrrev_b32 v5, 2, v2\nv_lshlrev_b32 v5, 12, v5\nv_and_b32 v6, 3, v2")
    b("v_lshl_add_u32 v5, v6, 8, v5\nv_lshl_add_u32 v5, v1, 4, v5")
    b(f"s_mov_b32 s{S_MASK}, 0xffff0000")
    if _stamps_on() and opt("stampset") == "front":
        b(Wait(regs=[v(XP, 20)]))
    stamp(b, 2, group="front")
    unpack = lambda i: f"v_lshlrev_b32 v{XF+2*i}, 16, v{XP+i}\nv_and_b32 v{XF+2*i+1}, s{S_MASK}, v{XP+i}"
    for i in range(20):
        b(unpack(i))
    A0, A1, M, D, VAR, RS, R0 = 88, 90, 92, 94, 98, 100, 104
    b(f"v_pk_add_f32 {v(A0,2)}, {v(XF,2)}, {v(XF+2,2)}\nv_pk_add_f32 {v(A1,2)}, {v(XF+4,2)}, {v(XF+6,2)}")
    for i in range(4, 20):
        acc = A0 if i % 2 == 0 else A1
        b(f"v_pk_add_f32 {v(acc,2)}, {v(acc,2)}, {v(XF+2*i,2)}")
    b(f"v_pk_add_f32 {v(A0,2)}, {v(A0,2)}, {v(A1,2)}\nv_add_f32 v{M}, v{A0}, v{A0+1}")
    b.extend(row_reduce("v_add_f32", f"v{M}"))
    b(f"v_mul_f32 v{M}, {fbits(1/640)}, v{M}")
    minus_mean = lambda d, x: f"v_pk_add_f32 {v(d,2)}, {v(x,2)}, {v(M,2)} op_sel_hi:[1,0] neg_lo:[0,1] neg_hi:[0,1]"
    for i in range(20):
        acc = A0 if i % 2 == 0 else A1
        d = D + 2 * (i % 2)
        b(minus_mean(d, XF + 2 * i))
        if i < 2:
            b(f"v_pk_mul_f32 {v(acc,2)}, {v(d,2)}, {v(d,2)}")
        else:
            b(f"v_pk_fma_f32 {v(acc,2)}, {v(d,2)}, {v(d,2)}, {v(acc,2)}")
    b(f"v_pk_add_f32 {v(A0,2)}, {v(A0,2)}, {v(A1,2)}\nv_add_f32 v{VAR}, v{A0}, v{A0+1}")
    b.extend(interleave(row_reduce("v_add_f32", f"v{VAR}"), bf16_round(f"v{M}", f"v{M}")))
    b(f"v_mul_f32 v{VAR}, {fbits(1/640)}, v{VAR}")
    tail = bf16_round(f"v{VAR}", f"v{VAR}") + [f"v_add_f32 v{VAR}, {fbits(1e-5)}, v{VAR}"] + bf16_round(f"v{VAR}", f"v{VAR}")
    tail += [f"v_sqrt_f32 v{VAR}, v{VAR}"] + bf16_round(f"v{VAR}", f"v{VAR}") + [f"v_rcp_f32 v{RS}, v{VAR}"]
    b.extend(interleave(tail, [minus_mean(XF + 2 * i, XF + 2 * i) for i in range(20)]))
    b(f"v_mov_b32 v{R0}, 0\nv_mov_b32 v{R0+1}, 0")
    for i in range(20):
        b(f"v_cvt_pk_bf16_f32 v{XP+i}, v{XF+2*i}, v{XF+2*i+1}")
    for i in range(20):
        b(unpack(i))
    for i in range(20):
        b(f"v_pk_mul_f32 {v(XF+2*i,2)}, {v(XF+2*i,2)}, {v(RS,2)} op_sel_hi:[1,0]")
        if i % 4 == 3:
            for j in range(i - 3, i + 1):
                b(f"v_cvt_pk_bf16_f32 v{XP+j}, v{XF+2*j}, v{XF+2*j+1}")
            b(f"buffer_store_dwordx4 {v(XP+i-3,4)}, v5, {WS}, s{S_A} offen sc1")
            b(f"s_add_u32 s{S_A}, s{S_A}, 16384")
    for i in range(20):
        b(f"v_dot2_f32_bf16 v{R0+i%2}, v{XP+i}, v{WP+i}, v{R0+i%2}")
    b("s_nop 2")
    b(f"v_add_f32 v{R0}, v{R0}, v{R0+1}")
    b.extend(row_reduce("v_add_f32", f"v{R0}"))
    b(f"v_cvt_pk_bf16_f32 v{R0}, v{R0}, v{R0}\nv_lshlrev_b32 v{R0}, 16, v{R0}")
    b(f"v_ashrrev_i32 v{R0+1}, 31, v{R0}\nv_or_b32 v{R0+1}, 0x80000000, v{R0+1}")
    b(f"v_xor_b32 v{R0}, v{R0}, v{R0+1}\nv_and_b32 v{R0}, s{S_MASK}, v{R0}")
    b(f"v_add_u32 v6, s{S_TOK}, v1\nv_sub_u32 v7, 0xffff, v6\nv_or_b32 v{R0}, v{R0}, v7")
    b(f"v_lshlrev_b32 v6, 2, v6\nv_lshl_add_u32 v6, v2, 26, v6\ns_mov_b32 s{S_A}, {WS_RK}")
    b(f"buffer_store_dword v{R0}, v6, {WS}, s{S_A} offen sc1")
    stamp(b, 3, group="front")
    b("s_waitcnt vmcnt(0)")


S_E, S_TAG = 59, 55


def launch_number(b, p_ws):
    b(f"s_add_u32 s{S_CNT}, s{p_ws}, {FLG_E}\ns_addc_u32 s{S_E}, s{p_ws+1}, 0\ns_load_dword s{S_E}, s[{S_CNT}:{S_E}], 0")


def signal(b, s_wave, s_head, s_tile):
    b(f"s_mul_i32 s{S_TAG}, s{S_E}, 0x9e3779b1\ns_add_u32 s{S_TAG}, s{S_TAG}, 0x7f4a7c15")
    b(f"s_lshr_b32 s{S_CNT}, s{s_tile}, 2\ns_lshl_b32 s{S_CNT}, s{S_CNT}, 8\ns_add_u32 s{S_CNT}, s{S_CNT}, {FLG_B}")
    b(f"s_lshl_b32 s{S_A}, s{s_head}, 2\ns_lshl_b32 s{S_B}, s{s_wave}, 26\ns_add_u32 s{S_A}, s{S_A}, s{S_B}")
    b(f"v_min_u32 v1, 1, v0\nv_lshlrev_b32 v1, 28, v1\nv_add_u32 v1, s{S_A}, v1\nv_mov_b32 v2, s{S_TAG}")
    b(f"buffer_store_dword v2, v1, {WS}, s{S_CNT} offen sc1")


def wait_block(b, label, s_wave):
    b(f"v_and_b32 v2, 7, v0\nv_lshlrev_b32 v2, 2, v2\ns_lshl_b32 s{S_B}, s{s_wave}, 5\nv_add_u32 v2, s{S_B}, v2")
    load = lambda r: f"buffer_load_dword v{r}, v2, {WS}, s{S_CNT} offen sc1"
    depth = int(opt("pdepth", 4))
    b(f"s_mov_b32 s{S_B}, {SPIN_LIMIT}")
    for r in range(depth - 1):
        b(f"{load(3 + r)}\ns_sleep {opt('fsleep', 2)}")
    b("front_poll:")
    for r in range(depth):
        b(f"{load(3 + (r - 1) % depth)}\ns_waitcnt vmcnt({depth - 1})\nv_cmp_ne_u32 vcc, s{S_TAG}, v{3 + r}")
        b.ins[-3].wr = []
        b(f"s_cbranch_vccz {label}\ns_sleep {opt('fsleep', 2)}")
    b(f"s_sub_u32 s{S_B}, s{S_B}, 1\ns_cmp_lg_u32 s{S_B}, 0\ns_cbranch_scc1 front_poll")


def poll_all(dst, tmp):
    return [f"v_lshrrev_b32 v{tmp}, 7, v{side.XO}", f"v_lshlrev_b32 v{tmp}, 8, v{tmp}",
            f"v_and_b32 v{dst}, 0x70, v{side.XO}", f"v_add_u32 v{tmp}, v{tmp}, v{dst}", f"s_mov_b32 s{S_CNT}, {FLG_B}",
            f"buffer_load_dwordx4 {v(dst,4)}, v{tmp}, {WS}, s{S_CNT} offen sc1"]


def wait_all(b, spin, label, dst, tmp):
    chk = "".join(f"v_xor_b32 v{dst+j}, s{S_TAG}, v{dst+j}\n" for j in range(4))
    chk += f"v_or3_b32 v{dst}, v{dst}, v{dst+1}, v{dst+2}\nv_or_b32 v{dst}, v{dst}, v{dst+3}\nv_cmp_ne_u32 vcc, 0, v{dst}"
    chk += f"\ns_cbranch_vccz {label}"
    b(chk)
    spin(f"s_mov_b32 s{S_B}, {SPIN_LIMIT}\nfront_all:\ns_sleep 2\n{poll_all(dst, tmp)[-1]}\ns_waitcnt vmcnt(0)\n{chk}")
    spin(f"s_sub_u32 s{S_B}, s{S_B}, 1\ns_cmp_lg_u32 s{S_B}, 0\ns_cbranch_scc1 front_all")


def next_launch_number(dst, tmp, s_wave):
    return [f"s_add_u32 s{S_E}, s{S_E}, 1", f"s_or_b32 s{S_B}, s2, s{s_wave}", f"s_min_u32 s{S_B}, s{S_B}, 1",
            f"s_lshl_b32 s{S_B}, s{S_B}, 28", f"v_lshlrev_b32 v{tmp}, 22, v{side.XO}", f"v_or_b32 v{tmp}, s{S_B}, v{tmp}",
            f"v_mov_b32 v{dst}, s{S_E}", f"s_mov_b32 s{S_CNT}, {FLG_E}",
            f"buffer_store_dword v{dst}, v{tmp}, {WS}, s{S_CNT} offen sc1"]
```

```python
from common import *

MF = "v_mfma_f32_16x16x32_bf16"
SPARE = 131072
LDS_STG = SPARE + 2048
LDS_FLAG, LDS_TOP, LDS_PART = LDS_STG + 24576, LDS_STG + 25600, LDS_STG + 26624
LDS_END = LDS_PART + 4096
OOB = 0x40000000

S_W, SRD_WS, AUX1, AUX2 = 3, 24, 20, 44
S_J1, S_T0, S_T1, S_STG, S_PREV, S_KEY, S_TT = 33, 35, 38, 50, 51, 52, 98
P_WO, P_WG, P_WU, P_WD, P_X, P_OUT = 88, 90, 92, 94, 60, 62
S_KS, S_CB, S_H, AUX3 = 98, 99, 101, 4
V_GATHER = 243
XO = 242
A_B, A_A = 212, 232
V_SIG, V_ONE, V_SIG0, V_POLL = 249, 250, 251, 254
WS = f"s[{SRD_WS}:{SRD_WS+3}]"


def lines(text):
    return [x for x in text.split("\n") if x.strip()]


def srd_list(d, ptr, size):
    return [f"s_mov_b32 s{d}, s{ptr}", f"s_mov_b32 s{d+1}, s{ptr+1}", f"s_mov_b32 s{d+2}, {size}", f"s_mov_b32 s{d+3}, 0x20000"]


def lane_of(dst):
    return [f"v_lshrrev_b32 v{dst}, 4, v{XO}"]


def key_loads(K):
    return [f"s_lshl_b32 s{S_T0}, s{S_W}, 11", f"s_add_u32 s{S_T0}, s{S_T0}, {WS_RK}",
            f"buffer_load_dwordx4 {v(K,4)}, v{XO}, {WS}, s{S_T0} offen sc1",
            f"buffer_load_dwordx4 {v(K+4,4)}, v{XO}, {WS}, s{S_T0} offen offset:1024 sc1"]


def route_level1(K, t):
    W = t + 8
    keep = lambda e, r: [f"v_mov_b32_dpp v{W + e // 4}, v{r} quad_perm:[0,1,2,3] row_mask:0xf bank_mask:{hex(1 << (e % 4))}"]
    L = [Wait(regs=[v(K, 8)])] + top8(K, 8, t, False, keep)
    L += [f"s_lshl_b32 s{S_T0}, s{S_W}, 9", f"s_add_u32 s{S_T0}, s{S_T0}, {LDS_FLAG}",
          f"v_lshrrev_b32 v{t}, 1, v{XO}", f"v_add_u32 v{t}, s{S_T0}, v{t}",
          Ins(f"ds_write_b64 v{t}, {v(W,2)}", "top"), Wait(tags="top")]
    return L


def route_level2(K, t):
    L = [f"v_lshlrev_b32 v{t+1}, 1, v{XO}", f"v_add_u32 v{t+1}, {LDS_FLAG}, v{t+1}", f"ds_read_b64 {v(K,2)}, v{t+1}",
         Wait(regs=v(K, 2))]
    L += top8(K, 2, t + 1, True, lambda e, r: [f"v_readfirstlane_b32 s{S_KEY+e}, v{r}"]) + lane_of(t)
    L += [f"v_mov_b32 v{K}, 0"] + [f"v_writelane_b32 v{K}, s{S_KEY+e}, {e}" for e in range(8)]
    if opt("pubtop"):
        L += lines(f"""s_min_u32 s39, s2, 1
s_lshl_b32 s39, s39, 30
v_lshrrev_b32 v{t+1}, 3, v{t}
v_lshlrev_b32 v{t+1}, 28, v{t+1}
v_lshl_add_u32 v{t+1}, v{t}, 2, v{t+1}
v_or_b32 v{t+1}, s39, v{t+1}
s_mov_b32 s39, {WS_TOP}
buffer_store_dword v{K}, v{t+1}, {WS}, s39 offen""")
    L += lines(f"""v_and_b32 v{K+1}, 0xffff, v{K}
v_sub_u32 v{K+1}, 0xffff, v{K+1}
v_and_b32 v{K+1}, 0x7ff, v{K+1}
v_mov_b32 v{K+2}, v{K+1}
v_permlane16_swap_b32 v{K+1}, v{K+2}
v_mov_b32 v{K+2}, v{K+1}
v_permlane32_swap_b32 v{K+1}, v{K+2}
v_lshrrev_b32 v{K+2}, 6, v{K+1}
v_mul_u32_u24 v{K+2}, 0x14000, v{K+2}
v_bfe_u32 v{K+3}, v{K+1}, 4, 2
v_lshl_add_u32 v{K+2}, v{K+3}, 10, v{K+2}
v_and_b32 v{K+3}, 15, v{K+1}
v_lshl_add_u32 v{K+2}, v{K+3}, 4, v{K+2}
v_lshrrev_b32 v{K+3}, 4, v{t}
v_lshl_add_u32 v{V_GATHER}, v{K+3}, 8, v{K+2}""")
    return L


def gather_loads():
    L = [f"s_mul_i32 s{S_T1}, s{S_W}, 20480"]
    for k in range(5):
        L += [f"buffer_load_dwordx4 {a(A_B+4*k,4)}, v{V_GATHER}, {WS}, s{S_T1} offen sc1", f"s_add_u32 s{S_T1}, s{S_T1}, 4096"]
    return L


def ffn1_loads(t):
    L = srd_list(AUX1, P_WG, WF_BYTES) + srd_list(AUX2, P_WU, WF_BYTES)
    L += lane_of(t) + [f"v_mul_u32_u24 v{t}, 0xd80, v{t}", f"s_mul_i32 s{S_T0}, s{S_W}, {160*3456}",
                       f"s_lshl_b32 s{S_T1}, s{S_J1}, 4", f"s_add_u32 s{S_T0}, s{S_T0}, s{S_T1}"]
    for i in range(3):
        if i == 2:
            L += lane_of(t + 1) + [f"v_lshrrev_b32 v{t+1}, 5, v{t+1}", f"v_lshl_add_u32 v{t}, v{t+1}, 30, v{t}"]
        for m, d in enumerate((AUX1, AUX2)):
            L += lds_dma(f"s_add_u32 m0, s{S_STG}, {m*3072+i*1024}",
                         [f"buffer_load_dwordx4 v{t}, s[{d}:{d+3}], s{S_T0} offen lds"], "f1w")
        L.append(f"s_add_u32 s{S_T0}, s{S_T0}, {64*3456}")
    return L


def natural_rows(dst, lane, tmp, shift):
    return lines(f"""v_lshrrev_b32 v{dst}, 4, v{lane}
v_bfe_u32 v{tmp}, v{lane}, 2, 2
v_lshl_add_u32 v{dst}, v{dst}, 3, v{tmp}
v_lshlrev_b32 v{dst}, {shift}, v{dst}""")


def part_write(acc, t):
    return [f"s_lshl_b32 s{S_T0}, s{S_W}, 10", f"s_add_u32 s{S_T0}, s{S_T0}, {LDS_PART}",
            f"v_add_u32 v{t}, s{S_T0}, v{XO}", Ins(f"ds_write_b128 v{t}, {v(acc,4)}", "part"), Wait(tags="part")]


def ffn1_mfma(t, acc):
    L = lane_of(t) + natural_rows(t + 1, t, t + 2, 4) + lines(f"""v_bfe_u32 v{t+2}, v{t}, 1, 1
v_mul_u32_u24 v{t+2}, 0xc00, v{t+2}
v_add3_u32 v{t+1}, v{t+1}, v{t+2}, s{S_STG}
v_and_b32 v{t+2}, 1, v{t}
v_lshl_add_u32 v{t+1}, v{t+2}, 3, v{t+1}""")
    L.append(Wait(regs=[a(A_B, 20)], tags="f1w"))
    L += [f"ds_read_b64_tr_b16 {a(A_A+4*k+2*h,2)}, v{t+1} offset:{512*k+64*h}" for k in range(5) for h in range(2)]
    L.append(Wait(regs=[a(A_A, 20)]))
    L += [f"{MF} {v(acc,4)}, {a(A_A+4*k,4)}, {a(A_B+4*k,4)}, {v(acc,4) if k else 0}" for k in range(5)]
    return L + part_write(acc, t)


def ffn1_finish(t, g, u):
    L = lane_of(t) + lines(f"""v_bfe_u32 v{t+1}, v{t}, 2, 1
v_lshlrev_b32 v{t+1}, 8, v{t+1}
v_lshrrev_b32 v{t+2}, 3, v{t}
v_lshl_add_u32 v{t+1}, v{t+2}, 4, v{t+1}
v_and_b32 v{t+3}, 3, v{t}
v_lshl_add_u32 v{t+1}, v{t+3}, 2, v{t+1}
v_add_u32 v{t+1}, {LDS_PART}, v{t+1}""")
    L += [f"ds_read_b32 v{x+w}, v{t+1} offset:{1024*w+512*m}" for m, x in enumerate((g, u)) for w in range(4)]
    L += lines(f"""s_cmp_eq_u32 s{S_W}, 0
s_cselect_b32 s{S_T0}, 0, {OOB}
v_mul_u32_u24 v{t+2}, 0xd80, v{t+2}
v_and_b32 v{t+3}, 7, v{t}
v_lshl_add_u32 v{t+2}, v{t+3}, 1, v{t+2}
v_and_b32 v{t+3}, 1, v{t}
v_lshl_add_u32 v{t+2}, v{t+3}, 30, v{t+2}
v_or_b32 v{t+2}, s{S_T0}, v{t+2}
v_min_u32 v{V_SIG}, 1, v{t}
v_lshlrev_b32 v{V_SIG}, 30, v{V_SIG}
v_or_b32 v{V_SIG}, s{S_T0}, v{V_SIG}
v_mov_b32 v{V_SIG0}, v{V_SIG}
v_mov_b32 v{V_ONE}, 1
s_mov_b32 s{S_FLG}, {FLG_HW}
s_lshl_b32 s{S_T0}, s{S_J1}, 4
s_add_u32 s{S_T0}, s{S_T0}, {WS_H}""")
    L.append(Wait(regs=[v(g, 4), v(u, 4)]))
    L += interleave(*[[f"v_add_f32 v{x}, v{x}, v{x+1}", f"v_add_f32 v{x+2}, v{x+2}, v{x+3}", f"v_add_f32 v{x}, v{x}, v{x+2}"]
                      + bf16_round(f"v{x}", f"v{x}") for x in (g, u)])
    L += silu(f"v{g}", f"v{g}", f"v{g+1}") + bf16_round(f"v{g}", f"v{g}")
    L += [f"v_mul_f32 v{g}, v{g}, v{u}",
          f"v_mov_b32_dpp v{g+1}, v{g} quad_perm:[1,0,3,2] row_mask:0xf bank_mask:0xf",
          f"v_cvt_pk_bf16_f32 v{g}, v{g}, v{g+1}",
          Ins(f"buffer_store_dword v{g}, v{t+2}, {WS}, s{S_T0} offen sc1", "h")]
    return L


S_FLG = 47
TRIPS = 5


def signal(s_cnt):
    return [f"buffer_atomic_add v{V_ONE}, v{V_SIG}, {WS}, s{S_FLG} offen",
            f"s_cmp_eq_u32 s{s_cnt}, {TRIPS-2}", f"s_cselect_b32 s39, 0, {OOB}", f"v_or_b32 v{V_SIG}, s39, v{V_SIG0}"]


def poll():
    return f"buffer_load_dword v{V_POLL}, off, {WS}, s{S_FLG} sc1"


def pair_rows(t):
    return lane_of(t) + lines(f"""v_and_b32 v{t+1}, 1, v{t}
v_lshrrev_b32 v{t}, 1, v{t}
v_mul_u32_u24 v{t}, 0x500, v{t}
v_lshl_add_u32 v{t}, v{t+1}, 4, v{t}""")


S_WL, S_WS, S_F2, S_F2M = 30, 31, 100, 51
V_PAIR, V_WOF, V_HALF, V_WST = 208, 209, 210, 211
WOF_STG = 4096


def loop_setup():
    L = srd_list(AUX1, P_WO, W_BYTES) + pair_rows(V_PAIR) + lane_of(V_WOF) + lines(f"""v_lshrrev_b32 v{V_HALF}, 5, v{V_WOF}
v_lshlrev_b32 v{V_HALF}, 30, v{V_HALF}
v_or_b32 v{V_HALF}, v{V_HALF}, v{V_PAIR}
v_bfe_u32 v{V_HALF+1}, v{V_WOF}, 2, 4
v_and_b32 v{V_WOF}, 3, v{V_WOF}
v_lshlrev_b32 v{V_WOF}, 3, v{V_WOF}
v_lshl_add_u32 v{V_WOF}, v{V_HALF+1}, 5, v{V_WOF}
v_add_u32 v{V_WOF}, s{S_STG}, v{V_WOF}
s_and_b32 s39, s2, 1
s_lshl_b32 s39, s39, 2
s_add_u32 s39, s39, s{S_W}
s_lshr_b32 s{S_WS}, s2, 1
s_mul_i32 s{S_WL}, s{S_WS}, 40960
s_mul_i32 s48, s39, 160
s_add_u32 s{S_WL}, s{S_WL}, s48
s_mul_i32 s{S_WS}, s{S_WS}, 5120
s_mul_i32 s39, s39, 655360
s_add_u32 s{S_WS}, s{S_WS}, s39
s_add_u32 s{S_WS}, s{S_WS}, {WS_WOF}
s_lshr_b32 s39, s2, 3
s_min_u32 s39, s39, 29
s_and_b32 s48, s2, 7
s_mul_i32 s48, s48, 30
s_add_u32 s39, s39, s48
s_mul_i32 s{S_KS}, s39, 1639
s_lshr_b32 s{S_KS}, s{S_KS}, 16
s_mul_i32 s{S_CB}, s{S_KS}, 40
s_sub_u32 s{S_CB}, s39, s{S_CB}
s_min_u32 s39, s{S_W}, 2
s_mul_i32 s48, s{S_KS}, 3
s_add_u32 s48, s48, s39
s_mul_i32 s{S_F2}, s48, {96*1280}
s_lshl_b32 s39, s{S_CB}, 5
s_add_u32 s{S_F2}, s{S_F2}, s39
s_mul_i32 s{S_H}, s48, 192
s_add_u32 s{S_H}, s{S_H}, {WS_H}
s_mov_b32 s{S_F2M}, s{S_STG}
v_mov_b32 v{V_WST}, v{XO}""")
    return L + srd_list(AUX3, P_WD, WF_BYTES)


def wof_load(half):
    return lds_dma(f"s_add_u32 m0, s{S_STG}, {WOF_STG + 1024 * half}",
                   [f"buffer_load_dwordx4 v{V_PAIR}, s[{AUX1}:{AUX1+3}], s{S_WL} offen lds"], f"wo{half}") + [
        f"s_add_u32 s{S_WL}, s{S_WL}, 32"]


def wof_store(half, s_cnt):
    L = [Wait(tags=f"wo{half}")]
    L += [f"ds_read_b64_tr_b16 {a(A_A+2*h,2)}, v{V_WOF} offset:{WOF_STG+1024*half+512*h}" for h in range(2)]
    L += [Wait(regs=[a(A_A, 4)]), Ins(f"buffer_store_dwordx4 {a(A_A,4)}, v{V_WST}, {WS}, s{S_WS} offen sc1", "wst"),
          f"s_add_u32 s{S_WS}, s{S_WS}, 1024"]
    if half == 0:
        L += [f"s_cmp_gt_u32 s{s_cnt}, {TRIPS-2}", f"s_cselect_b32 s39, 0, {OOB}", f"v_or_b32 v{V_WST}, s39, v{V_WST}",
              f"v_or_b32 v{V_PAIR}, s39, v{V_PAIR}"]
    return L


def ffn2_piece():
    return lds_dma(f"s_mov_b32 m0, s{S_F2M}",
                   [f"buffer_load_dwordx4 v{V_HALF}, s[{AUX3}:{AUX3+3}], s{S_F2} offen lds"], "f2w") + [
        f"s_add_u32 s{S_F2}, s{S_F2}, {16*1280}", f"s_add_u32 s{S_F2M}, s{S_F2M}, 512"]


def ffn2_hidden(t):
    L = lane_of(t) + lines(f"""v_and_b32 v{t+1}, 7, v{t}
v_mul_u32_u24 v{t+1}, 0xd80, v{t+1}
v_lshrrev_b32 v{t}, 4, v{t}
v_lshl_add_u32 v{t+1}, v{t}, 4, v{t+1}""")
    L += [f"buffer_load_dwordx4 {a(A_B+4*k,4)}, v{t+1}, {WS}, s{S_H} offen offset:{64*k} sc1" for k in range(3)]
    return L


def ffn2_mfma(t, acc):
    L = lane_of(t) + natural_rows(t + 1, t, t + 2, 5) + lines(f"""v_and_b32 v{t+2}, 3, v{t}
v_lshl_add_u32 v{t+1}, v{t+2}, 3, v{t+1}
v_add_u32 v{t+1}, s{S_STG}, v{t+1}""")
    L.append(Wait(regs=[a(A_B, 12)], tags="f2w"))
    L += [f"ds_read_b64_tr_b16 {a(A_A+4*k+2*h,2)}, v{t+1} offset:{1024*k+128*h}" for k in range(3) for h in range(2)]
    L.append(Wait(regs=[a(A_A, 12)]))
    L += [f"{MF} {v(acc,4)}, {a(A_A+4*k,4)}, {a(A_B+4*k,4)}, {v(acc,4) if k else 0}" for k in range(3)]
    return L + part_write(acc, t)


def ffn2_finish(t, p):
    L = [f"v_add_u32 v{t}, {LDS_PART}, v{XO}"]
    L += [f"ds_read_b128 {v(p[w],4)}, v{t} offset:{1024*w}" for w in range(3)]
    L += lane_of(t) + lines(f"""s_min_u32 s{S_T0}, s{S_W}, 1
s_lshl_b32 s{S_T0}, s{S_T0}, 30
v_and_b32 v{t+1}, 7, v{t}
v_mul_u32_u24 v{t+1}, 0xa00, v{t+1}
v_lshrrev_b32 v{t+2}, 4, v{t}
v_lshl_add_u32 v{t+1}, v{t+2}, 4, v{t+1}
v_bfe_u32 v{t+2}, v{t}, 3, 1
v_lshl_add_u32 v{t+1}, v{t+2}, 30, v{t+1}
v_or_b32 v{t+1}, s{S_T0}, v{t+1}
s_mul_i32 s{S_T0}, s{S_KS}, 20480
s_lshl_b32 s{S_T1}, s{S_CB}, 6
s_add_u32 s{S_T0}, s{S_T0}, s{S_T1}
s_add_u32 s{S_T0}, s{S_T0}, {WS_YP}""")
    L.append(Wait(regs=[v(x, 4) for x in p]))
    L += [f"v_add_f32 v{p[0]+j}, v{p[0]+j}, v{p[w]+j}" for w in (1, 2) for j in range(4)]
    L.append(Ins(f"buffer_store_dwordx4 {v(p[0],4)}, v{t+1}, {WS}, s{S_T0} offen sc1", "yp"))
    return L


def ffn2_signal():
    return lines(f"""s_mul_i32 s39, s{S_CB}, 13108
s_lshr_b32 s39, s39, 16
s_lshl_b32 s39, s39, 8
s_add_u32 s39, s39, {FLG_Y}
s_cmp_lt_u32 s2, 240
s_cselect_b32 s48, 0, {OOB}
v_or_b32 v{V_SIG}, s48, v{V_SIG0}
buffer_atomic_add v{V_ONE}, v{V_SIG}, {WS}, s39 offen""")
```

```python
import common
from common import *
import k_side as side

MF = "v_mfma_f32_16x16x32_bf16"
ACC, XR, BV = 0, 80, 90
VB, VA, VO, VW, VR, LA, YO, SIG, T = 110, 114, 117, 118, 119, 122, 123, 124, 192
LA2 = T + 10
VO2 = XR + 3
VR2 = XR + 0
YS, YA = 204, 224
quads = lambda f, lo, hi: [f(x, 4) for x in range(lo, hi, 4)]
A_REGS = quads(a, 212, 256) + quads(a, 128, 160) + quads(v, 128, 192) + quads(a, 0, 84)
POOL = quads(a, 84, 128) + quads(a, 160, 212) + quads(v, 244, 256)
F_LOOP, F_LAST, F_CHECK = 11, 35, 56
EARLY_VA = (side.XO, 252, 253)
LDS_SLOT = (0, 1, 2, 4, 5, 3)
S_W, WS = side.S_W, side.WS
S_TT, S_CT, S_B, S_Y, S_MASK, S_KH, S_B2, S_ID = 31, 29, 30, 32, 34, 36, 37, 40
SRD_X, SRD_OUT = 12, 16
N_LDS = 24
N_REG = 80 - N_LDS
RED_LDS = 98304
S_M0 = 28


def acc(mb, q):
    return ACC + (mb * 4 + q) * 4


def early_offsets():
    return [f"v_add_u32 v{EARLY_VA[j]}, {4096*j}, v{side.XO}" for j in (1, 2)]


def early_setup():
    L = ["s_and_b32 s38, s2, 1", "s_lshl_b32 s38, s38, 2", f"s_add_u32 s38, s38, s{S_W}", "s_mul_i32 s38, s38, 81920",
         "s_lshr_b32 s39, s2, 5", "s_mul_i32 s39, s39, 655360", "s_add_u32 s38, s38, s39", f"s_add_u32 s4, s38, {WS_WOF}"]
    return L + [f"s_add_u32 s{4+j}, s4, {12288*j}" for j in range(1, 7)] + early_offsets()


def a_operands(f, regs):
    off = f * 1024
    return f"v{regs[(off % 12288) // 4096]}, {WS}, s{4 + off // 12288} offen offset:{off % 4096} sc1"


def a_load(f, regs=EARLY_VA):
    return f"buffer_load_dwordx4 {A_REGS[f]}, {a_operands(f, regs)}"


def a_dma(k, regs=EARLY_VA):
    return lds_dma(f"s_add_u32 m0, s{S_M0}, {LDS_SLOT[k] * 16384}",
                   [f"buffer_load_dwordx4 {a_operands(N_REG + 4 * k + j, regs)} lds" for j in range(4)], f"al{k}")


def lds_place(n):
    slot = LDS_SLOT[n // 4]
    return (LA if slot < 4 else LA2), (slot % 4) * 16384 + (n % 4) * 1024


def setup(b):
    b(f"s_and_b32 s{S_KH}, s2, 1\ns_bfe_u32 s{S_TT}, s2, 0x20001\ns_lshl_b32 s{S_TT}, s{S_TT}, 2")
    b(f"s_bfe_u32 s38, s2, 0x20003\ns_add_u32 s{S_TT}, s{S_TT}, s38\ns_lshr_b32 s{S_CT}, s2, 5")
    b(f"v_mov_b32 v{VA}, v{side.XO}\nv_add_u32 v{VA+1}, 0x1000, v{VA}\nv_add_u32 v{VA+2}, 0x2000, v{VA}")
    b(f"s_lshl_b32 s38, s{S_KH}, 2\ns_add_u32 s38, s38, s{S_W}\ns_lshl_b32 s{S_B}, s38, 16")


def late_setup():
    LANE, N, G, TOK = T, T + 1, T + 2, T + 3
    b = Block("late")
    b(f"v_lshrrev_b32 v{LANE}, 4, v{VA}\nv_and_b32 v{N}, 15, v{LANE}\nv_lshrrev_b32 v{G}, 4, v{LANE}")
    for q in range(4):
        b(f"s_add_u32 s38, s{S_W}, {q}\ns_and_b32 s38, s38, 3\ns_lshl_b32 s38, s38, 11\nv_add_u32 v{VB+q}, s38, v{VA}")
        b(f"s_sub_u32 s38, s{S_W}, {q}\ns_and_b32 s38, s38, 3\ns_mul_i32 s38, s38, 15360")
        b(f"s_add_u32 s38, s38, {RED_LDS}\nv_add_u32 v{VR+q-1 if q else VW}, s38, v{VA}")
    b(f"v_add_u32 v{LA}, s{S_M0}, v{VA}\nv_add_u32 v{LA2}, 0x10000, v{LA}")
    b(f"s_and_b32 s38, s{S_TT}, 14\ns_add_u32 s38, s38, s{S_KH}\ns_lshl_b32 s38, s38, 2\ns_add_u32 s38, s38, s{S_W}")
    b(f"s_lshl_b32 s38, s38, 7\ns_add_u32 s38, s38, {FLG_O}")
    b(f"s_lshl_b32 s39, s{S_CT}, 8\ns_add_u32 s39, s39, {FLG_Y}")
    b(f"v_mov_b32 v{T+8}, s38\nv_writelane_b32 v{T+8}, s39, 1\nv_mov_b32 v{T+9}, 4\nv_writelane_b32 v{T+9}, 30, 1")
    b(f"s_lshl_b32 s{S_TT}, s{S_TT}, 1\ns_add_u32 s{S_TT}, s{S_TT}, s{S_KH}\ns_add_u32 s{S_B}, s{S_B}, {WS_OF}")
    b(f"s_lshl_b32 s38, s{S_TT}, 19\ns_add_u32 s{S_B2}, s{S_B}, s38\ns_xor_b32 s38, s38, 0x80000\ns_add_u32 s{S_B}, s{S_B}, s38")
    b(f"s_lshl_b32 s{S_ID}, s{S_CT}, 5\ns_add_u32 s{S_ID}, s{S_ID}, s{S_TT}")
    b(f"s_lshl_b32 s38, s{S_TT}, 6\ns_lshl_b32 s39, s{S_W}, 4\ns_add_u32 s38, s38, s39\nv_add_u32 v{TOK}, s38, v{N}")
    b(f"v_mul_u32_u24 v{VO}, 0x500, v{TOK}\nv_lshl_add_u32 v{VO}, v{G}, 3, v{VO}\ns_mul_i32 s38, s{S_CT}, 160\nv_add_u32 v{VO}, s38, v{VO}")
    srd(b, SRD_X, side.P_X, X_BYTES)
    srd(b, SRD_OUT, side.P_OUT, X_BYTES)
    b(f"s_mul_i32 s38, s{S_TT}, 81920\ns_lshl_b32 s39, s{S_W}, 10\ns_add_u32 s38, s38, s39")
    b(f"s_mul_i32 s39, s{S_CT}, 10\nv_lshrrev_b32 v{T+4}, 1, v{G}\nv_add_u32 v{T+4}, s39, v{T+4}")
    b(f"v_and_b32 v{T+5}, 1, v{G}\nv_lshlrev_b32 v{T+5}, 3, v{T+5}\nv_lshl_add_u32 v{T+5}, v{N}, 4, v{T+5}")
    for mb in range(5):
        b(f"v_lshrrev_b32 v{T+6}, 2, v{T+4}\nv_lshl_add_u32 v{T+6}, v{T+6}, 12, v{T+5}")
        b(f"v_and_b32 v{T+7}, 3, v{T+4}\nv_lshl_add_u32 v{T+6}, v{T+7}, 8, v{T+6}")
        b(f"buffer_load_dwordx2 {v(YA+2*mb,2)}, v{T+6}, {WS}, s38 offen sc1")
        b(f"v_add_u32 v{T+4}, 2, v{T+4}")
        b(f"buffer_load_dwordx2 {v(XR+2*mb,2)}, v{VO}, s[{SRD_X}:{SRD_X+3}], 0 offen offset:{32*mb}")
    b(f"v_mov_b32 v{YO}, {side.OOB}\nv_bfrev_b32 v{SIG}, 1\nv_sub_u32 v{TOK}, 0xffff, v{TOK}\ns_mov_b32 s{S_MASK}, 0xffff0000")
    for e in range(8):
        b(f"s_and_b32 s38, s{side.S_KEY+e}, 0xffff\nv_cmp_eq_u32 vcc, s38, v{TOK}")
        b(f"v_mov_b32 v{T+4}, s{side.S_KEY+e}\nv_mov_b32 v{T+5}, {e*2560}")
        b(f"v_cndmask_b32 v{SIG}, v{SIG}, v{T+4}, vcc\nv_cndmask_b32 v{YO}, v{YO}, v{T+5}, vcc")
    k, m = SIG, T + 4
    b(f"v_lshl_add_u32 v{YO}, v{G}, 4, v{YO}\ns_mul_i32 s{S_Y}, s{S_CT}, 320\ns_add_u32 s{S_Y}, s{S_Y}, {WS_YP}")
    b(f"v_ashrrev_i32 v{m}, 31, v{k}\nv_not_b32 v{m}, v{m}\nv_or_b32 v{m}, 0x80000000, v{m}")
    b(f"v_xor_b32 v{k}, v{k}, v{m}\nv_and_b32 v{k}, s{S_MASK}, v{k}")
    b(f"v_mul_f32 v{k}, {fbits(-LOG2E)}, v{k}\nv_exp_f32 v{k}, v{k}\nv_add_f32 v{k}, 1.0, v{k}\nv_rcp_f32 v{k}, v{k}")
    b.extend(bf16_round(f"v{k}", f"v{k}"))
    return b.ins


def signal_setup(t):
    return ["s_lshr_b32 s39, s37, 2", "s_lshl_b32 s39, s39, 3", "s_lshr_b32 s38, s36, 2", "s_add_u32 s39, s39, s38", "s_lshl_b32 s39, s39, 7", f"s_add_u32 s39, s39, {FLG_O}",
            f"s_lshl_b32 s38, s{S_W}, 26", f"v_lshlrev_b32 v{t}, 22, v{side.XO}", f"v_or_b32 v{t}, s38, v{t}",
            f"v_mov_b32 v{t+1}, 1"]


def signal(t):
    return f"buffer_atomic_add v{t+1}, v{t}, {WS}, s39 offen"


POLL = f"buffer_load_dword v{T+3}, v{T+8}, {WS}, 0 offen sc1"


def check(label):
    return f"v_cmp_lt_u32 vcc, v{T+3}, v{T+9}\ns_cbranch_vccz {label}"


def spin(b, name, label):
    b(f"s_mov_b32 s35, {SPIN_LIMIT}\n{name}:\ns_sleep 2\n{POLL}\ns_waitcnt vmcnt(0)\n{check(label)}")
    b(f"s_sub_u32 s35, s35, 1\ns_cmp_lg_u32 s35, 0\ns_cbranch_scc1 {name}")


def spin_pipelined(b, name, label):
    depth, nap = int(opt("tdepth", 3)), opt("tsleep", 3)
    load = lambda r: POLL.replace(f"v{T+3},", f"v{T+3+r},", 1)
    b(f"s_waitcnt vmcnt(0)\ns_mov_b32 s35, {SPIN_LIMIT}")
    for r in range(depth - 1):
        b(f"{load(r)}\ns_sleep {nap}")
        b.ins[-2].wr = []
    b(f"{name}:")
    for r in range(depth):
        b(f"{load((r - 1) % depth)}\ns_waitcnt vmcnt({depth - 1})")
        b.ins[-2].wr = []
        b(check(label).replace(f"v{T+3},", f"v{T+3+r},", 1) + f"\ns_sleep {nap}")
    b(f"s_sub_u32 s35, s35, 1\ns_cmp_lg_u32 s35, 0\ns_cbranch_scc1 {name}")


def partial_sums():
    dst = lambda p, mb: (YA, YS)[p] + 4 * mb if p < 2 else ACC + 20 * (p - 2) + 4 * mb
    loads = []
    for p in range(6):
        loads += [f"buffer_load_dwordx4 {v(dst(p,mb),4)}, v{YO}, {WS}, s{S_Y} offen offset:{64*mb} sc1" for mb in range(5)]
        loads.append(f"s_add_u32 s{S_Y}, s{S_Y}, 20480")
    return loads, [f"v_add_f32 v{YA+i}, v{YA+i}, v{dst(p,0)+i}" for p in range(1, 6) for i in range(20)]


def gate_stream():
    L = []
    for i in range(0, 20, 4):
        rows = []
        for j in range(4):
            y, x = f"v{YA+i+j}", f"v{BV+i+j}"
            rows.append(bf16_round(y, y) + [f"v_mul_f32 {y}, {y}, v{SIG}"] + bf16_round(y, y) + [f"v_add_f32 {x}, {x}, {y}"]
                        + bf16_round(x, x) + silu(x, x, f"v{T+4+j}") + bf16_round(x, x))
        L += interleave(*rows)
    for i in range(10):
        L += [f"v_lshlrev_b32 v{YA+2*i}, 16, v{XR+i}", f"v_and_b32 v{YA+2*i+1}, s{S_MASK}, v{XR+i}"]
    return L


def exchange_offset(final, q, mb):
    n = 5 * (q - 1) + mb
    return (n // 4) * 16384 + (n % 4) * 1024 if final else 1024 * n


def exchange_writes(mb, final):
    return [f"ds_write_b128 v{LA if final else VW}, {v(acc(mb,q),4)} offset:{exchange_offset(final, q, mb)}" for q in range(1, 4)]


def exchange_reads(b, final):
    b("s_waitcnt lgkmcnt(0)\ns_barrier")
    for mb in range(5):
        for q in range(1, 4):
            b(f"ds_read_b128 {v(acc(mb,q),4)}, v{(VR2 if final else VR)+q-1} offset:{exchange_offset(final, q, mb)}")


def xp_offsets(flip):
    return [f"s_xor_b32 s38, s{S_ID}, {flip}", "s_lshl_b32 s38, s38, 2", f"s_add_u32 s38, s38, s{S_W}",
            "s_lshl_b32 s38, s38, 12", f"s_add_u32 s38, s38, {WS_XP}"]


def build(go, spin1, start, routed, main1, spin2, main2, done, sig):
    free = list(POOL)
    where = {("a", f): A_REGS[f] for f in range(N_REG)}
    b = go
    b("tail_go:")
    b(signal(sig))
    stamp(b, 3, group="tail")
    setup(b)
    va = (VA, VA + 1, VA + 2)
    pre = [[a_load(f, va)] for f in range(done, N_REG)] + [a_dma(5, va)]
    n2, n3 = int(opt("pre2", 4)), int(opt("pre3", 10))
    for x in pre[:n2]:
        b.extend(x)
    b.extend(late_setup())
    b(POLL)
    for x in pre[n2:n3]:
        b.extend(x)
    late_a = pre[n3:]
    for i in range(10):
        b(f"v_lshlrev_b32 v{BV+2*i}, 16, v{YA+i}\nv_and_b32 v{BV+2*i+1}, s{S_MASK}, v{YA+i}")
    for i in range(20):
        b(f"v_mov_b32 v{YA+i}, 0")
    b(check("tail_ready"))
    (spin_pipelined if opt("tdepth", 3) != "0" else spin)(spin1, "tail_spin", "tail_ready")

    b = start
    b("tail_ready:")
    stamp(b, 4, group="tail")
    stamp(b, 1, group="p1")
    todo = []
    for p in range(16):
        todo += [("b", p, q, kk) for q in range(4) for kk in range(2)]
        todo.append(("step", f"s_add_u32 s{S_B}, s{S_B}, 8192" if p != 7 else f"s_mov_b32 s{S_B}, s{S_B2}"))
    frag = lambda p, kk, mb: (2 * (p % 8) + kk) * 5 + mb
    lds_todo = [(p, kk, mb) for p in range(16) for mb in range(5) for kk in range(2) if frag(p, kk, mb) >= N_REG]
    reserve = [0]

    def next_load():
        out = []
        while todo and todo[0][0] == "step":
            out.append(todo.pop(0)[1])
        if todo and len(free) > reserve[0]:
            it = todo.pop(0)
            where[it] = free.pop(0)
            out.append(f"buffer_load_dwordx4 {where[it]}, v{VB+it[2]}, {WS}, s{S_B} offen offset:{1024*it[3]} sc1")
        return out

    for _ in range(int(opt("burst0", 8))):
        b.extend(next_load())
    b(f"v_cmp_gt_u32 vcc, {side.OOB}, v{YO}\ns_and_saveexec_b64 s[42:43], vcc\ns_cbranch_execz tail_plain")
    loads, sums = partial_sums()
    routed("s_waitcnt vmcnt(30)")
    routed.extend(loads + ["s_waitcnt vmcnt(0)"] + sums)
    b = main1
    b("tail_plain:\ns_mov_b64 exec, s[42:43]")
    stamp(b, 3, group="p1")
    lent = [v(YS + 4 * i, 4) for i in range(5)]
    free.extend(lent)
    extra, gate = [], [Fill(x) for x in gate_stream()]
    for q in range(1, 4):
        gate += [Fill(x) for x in (f"s_sub_u32 s41, s{S_W}, {q}", "s_and_b32 s41, s41, 3", "s_lshl_b32 s41, s41, 12",
                                   f"v_add_u32 v{VR2+q-1}, s41, v{VA}")]
    gate += [Fill(x) for x in (f"v_bfe_u32 v{T+4}, v{VA}, 8, 1", f"v_mul_u32_u24 v{T+4}, 24, v{T+4}", f"v_add_u32 v{VO2}, v{VO}, v{T+4}")]
    due = {}
    for p in range(16):
        if p in (1, 4, 8):
            stamp(b, {1: 4, 4: 5, 8: 6}[p], group="p1")
        if p >= 9:
            stamp(b, p - 8, group="p2")
        if p == 7:
            assert not extra
            extra += [Fill(x) for x in xp_offsets(1) + [f"v_lshrrev_b32 v{T}, 1, v{VA}"]]
        if p == 8:
            reserve[0] = 0
            while free and todo:
                b.extend(next_load())
            exchange_reads(b, False)
            stamp(b, 5, group="tail")
            stamp(b, 7, group="p1")
            for mb in range(5):
                y = acc(mb, 0)
                L = [Wait(regs=[v(y + 4, 12)])]
                L += [f"v_add_f32 v{y+4+j}, v{y+4+j}, v{y+8+j}" for j in range(4)]
                L += [f"v_add_f32 v{y+j}, v{y+j}, v{y+12+j}" for j in range(4)]
                L += [f"v_add_f32 v{y+j}, v{y+j}, v{y+4+j}" for j in range(4)]
                L += [f"v_cvt_pk_bf16_f32 v{y+4+j}, v{y+2*j}, v{y+2*j+1}" for j in range(2)]
                L.append(Ins(f"buffer_store_dwordx2 {v(y+4,2)}, v{T}, {WS}, s38 offen offset:{512*mb} sc1", "xp"))
                extra += [Fill(x) for x in L]
                due[mb] = extra[-1]
            extra += [Fill(x) for x in [
                f"s_xor_b32 s38, s{S_ID}, 1", "s_lshl_b32 s38, s38, 7", f"s_add_u32 s38, s38, {FLG_X}",
                f"v_mov_b32 v{T+1}, {side.OOB}", f"v_writelane_b32 v{T+1}, s38, 0", f"v_mov_b32 v{T+2}, 1",
                f"s_xor_b32 s38, s38, 128", f"v_mov_b32 v{T+8}, s38", f"v_mov_b32 v{T+9}, 4"]]
        if p == int(opt("xsig", 11)):
            extra += [Fill(Wait(tags="xp")), Fill(f"buffer_atomic_add v{T+2}, v{T+1}, {WS}, 0 offen")]
        if p == int(opt("xpoll", 13)):
            extra += [Fill(POLL)] + [Fill(x) for x in xp_offsets(0)]
        if p == int(opt("xchk", 15)):
            assert not extra and not lent
            b(check("tail_partner"))
            spin(spin2, "tail_spin2", "tail_partner")
            b = main2
            b("tail_partner:")
            stamp(b, 8, group="p2")
            extra = [Fill(f"buffer_load_dwordx2 {v(YS+4*mb+2,2)}, v{T}, {WS}, s38 offen offset:{512*mb} sc1") for mb in range(5)]
        for mb in range(5):
            if p == 8:
                while due[mb] in extra:
                    b(extra.pop(0).ins)
            src = lambda kk: where["a", frag(p, kk, mb)] if frag(p, kk, mb) < N_REG else where["l", p, kk, mb]
            need = [src(0), src(1)]
            assert not any(str(y).split(",")[0].endswith(x) for x in need for L in late_a for y in L)
            if mb == 0:
                need += [where["b", p, q, kk] for q in range(4) for kk in range(2)]
            b(Wait(regs=need))
            spine = []
            for q in range(4):
                for step in range(2):
                    kk = step if q % 2 == 0 else 1 - step
                    d = v(acc(mb, q), 4)
                    spine.append(f"{MF} {d}, {src(kk)}, {where['b', p, q, kk]}, {d if p % 8 or step else 0}")
            non = []
            g = 5 * p + mb
            ahead = lambda n: lds_todo and 5 * lds_todo[0][0] + lds_todo[0][2] <= g + n
            while ahead(int(opt("ahead", 2))) and free:
                it = lds_todo.pop(0)
                if it[0] < 8:
                    assert not late_a
                    non.append(Fill(Wait(tags=f"al{(frag(*it) - N_REG) // 4}")))
                where[("l",) + it] = free.pop(0)
                reg, imm = lds_place(frag(*it) - N_REG)
                non.append(Fill(f"ds_read_b128 {where[('l',) + it]}, v{reg} offset:{imm}"))
            reserve[0] = 2 if ahead(8) else 0
            for k in range(int(opt("burst", 2)) if p != 8 else 2):
                x = next_load()
                non += [Fill(y, lo=k * int(opt("space", 4))) for y in x]
                if not x:
                    break
            for k in range(int(opt("aburst", 1))):
                if late_a:
                    non += [Fill(y, lo=2 + 4 * k) for y in late_a.pop(0)]
            non.sort(key=lambda f: f.lo)
            _, rest = weave(b, spine, [], non, flush=False, extra=extra if extra else gate)
            b.extend([f.ins for f in rest])
            free.extend(src(kk) for kk in range(2) if p >= 8 or frag(p, kk, mb) >= N_REG)
            if p % 8 == 7:
                extra += [Fill(x) for x in exchange_writes(mb, p == 15)]
        if p % 8 == 7:
            b.extend([f.ins for f in extra])
            extra = []
        free.extend(where["b", p, q, kk] for q in range(4) for kk in range(2))
        if p >= 8:
            lent = [x for x in lent if x not in free or free.remove(x)]
    assert not todo and not lds_todo and not extra and not gate
    stamp(b, 6, group="tail")
    stamp(b, 8, group="p1")
    pk = lambda op, d, x: [f"v_pk_{op}_f32 {v(d+j,2)}, {v(d+j,2)}, {v(x+j,2)}" for j in (0, 2)]
    for mb in range(5):
        for j in range(2):
            b(f"v_lshlrev_b32 v{YS+4*mb+2*j}, 16, v{YS+4*mb+2+j}\nv_and_b32 v{YS+4*mb+2*j+1}, s{S_MASK}, v{YS+4*mb+2+j}")
        b.extend(pk("add", acc(mb, 0), YS + 4 * mb))
    exchange_reads(b, True)
    for mb in range(5):
        y, p = acc(mb, 0), acc(mb, 1)
        b.extend(pk("add", y + 4, y + 8) + pk("add", y, y + 12))
        steps = [pk("add", y, y + 4), pk("mul", y, BV + 4 * mb), pk("add", y, YA + 4 * mb)]
        for k, ops in enumerate(steps):
            b.extend(ops)
            d = p if k < 2 or mb % 2 == 0 else acc(mb - 1, 1) + 2
            b.extend([f"v_cvt_pk_bf16_f32 v{d+j}, v{y+2*j}, v{y+2*j+1}" for j in range(2)])
            if k < 2:
                for j in range(2):
                    b(f"v_lshlrev_b32 v{y+2*j}, 16, v{p+j}\nv_and_b32 v{y+2*j+1}, s{S_MASK}, v{p+j}")
        out = f"s[{SRD_OUT}:{SRD_OUT+3}], 0 offen"
        if mb == 4:
            b(f"buffer_store_dwordx2 {v(p,2)}, v{VO}, {out} offset:128")
        elif mb % 2:
            r = acc(mb - 1, 1)
            b(f"v_permlane16_swap_b32 v{r}, v{r+2}\nv_permlane16_swap_b32 v{r+1}, v{r+3}")
            b(f"buffer_store_dwordx4 {v(r,4)}, v{VO2}, {out} offset:{32*(mb-1)}")
    stamp(b, 7, group="tail")
```

```python
import os
import sys
sys.path.insert(0, os.path.dirname(os.path.abspath(__file__)))
import k_attn

ROOT = os.path.dirname(os.path.dirname(os.path.abspath(__file__)))
STEM = "recurrent_scan__mha_block_cached__moe_arch_mod__prompt"


SUMMARY = """
Generated by tools/gen.py. One launch, 256 co-resident workgroups (head x 256 tokens), four waves of 64 tokens.
1. LayerNorm and router score of 8 tokens per workgroup, handed over through d_ws. The flags of this first hand-off
   carry a value derived from one d_ws word that every launch steps; it only tells this launch's flags from older ones.
   All later hand-offs use counters that the launch zeroes itself.
2. Query projection, with the top-8 selection woven in.
3. Attention over 64-key tiles. The softmax offset is the row maximum over the first 16 keys; if any row sum leaves
   the safe range (>= 2^40 or NaN) the workgroup redoes its rows in a loop with the running maximum (attn_redo).
   The routed SwiGLU FFN and a fragment re-layout of wo are woven into the tile loop.
4. Output projection (128 tokens x 80 columns over half of K, partner workgroups exchange partial sums), gate, residual.
"""


def render(kernels):
    ref = open(os.path.join(ROOT, STEM + ".s.ref")).read().split("\n")
    head = [l for l in ref if l.startswith("; Kernarg") or l.startswith(";   offset")]
    named = "" if len(kernels) == 1 else "kernel={} "
    out = head + [f"; @launch {named.format(k['name'])}grid=({k['grid']},1,1) block=({k['block']},1,1) lds={k['lds']}" for k in kernels]
    out += ["; " + line for line in SUMMARY.strip().split("\n")]
    out += ['.amdgcn_target "amdgcn-amd-amdhsa--gfx950"', ".text"]
    seen = []
    for k in kernels:
        if k["name"] not in seen:
            seen.append(k["name"])
            out.append(k["text"])
    out.append('.section .rodata,"a"')
    done = []
    for k in kernels:
        if k["name"] not in done:
            done.append(k["name"])
            out += [".p2align 6", k["desc"]]
    return "\n".join(out) + "\n"


if __name__ == "__main__":
    import common
    if "--stamps" in sys.argv:
        sys.argv.remove("--stamps")
        common.STAMPS = True
    for x in list(sys.argv[1:]):
        if "=" in x:
            k, val = x.split("=", 1)
            common.OPT[k] = val
            sys.argv.remove(x)
    import asmlib
    asmlib.MAX_FREE = int(common.opt("maxfree", 3))
    ks = [k_attn.build()]
    if common.opt("diag"):
        import k_diag
        ks.append(k_diag.build(*map(int, common.opt("diag").split(","))))
    if common.opt("order"):
        ks = [ks[int(c)] for c in common.opt("order")]
    if common.opt("nops"):
        from asmlib import descriptor, entry
        nop = dict(name="nop_kernel", text=entry("nop_kernel") + "\n  s_endpgm", desc=descriptor("nop_kernel", 8, 16, 8),
                   grid=256, block=64, lds=0)
        for c in common.opt("nops"):
            ks.insert(int(c), nop)
    path = sys.argv[1] if len(sys.argv) > 1 else os.path.join(ROOT, STEM + ".s")
    open(path, "w").write(render(ks))
    print("wrote", path)
```
